```python
import torch

def _softmax(x, axis=-1):
    return torch.softmax(x, dim=axis)
def _gelu(x):
    return torch.nn.functional.gelu(x, approximate="tanh")
def _silu(x):
    return torch.nn.functional.silu(x)
def _sigmoid(x):
    return torch.sigmoid(x)
def _layernorm(x, axis=-1, eps=1e-5):
    m = x.mean(dim=axis, keepdim=True)
    v = x.var(dim=axis, keepdim=True, unbiased=False)
    return (x - m) / torch.sqrt(v + eps)
def _scatter_add(tgt, idx, src, axis=0):
    return tgt.clone().index_add_(axis, idx, src)
def _segment_sum(src, seg, n):
    out = torch.zeros((n,) + src.shape[1:], dtype=src.dtype)
    return out.index_add_(0, seg, src)
def _pad(x, pw):
    flat = tuple(v for pair in reversed(pw) for v in pair)
    return torch.nn.functional.pad(x, flat)

kernel_name = 'standalone__gqa_softmax__near_ridge'

def setup_inputs():

    _w = (lambda a: (lambda t: t.to(torch.bfloat16) if t.is_floating_point() else t)(torch.as_tensor(a)))
    B, Hq, Hkv, Sq, Sk, D = 16, 32, 4, 384, 384, 128
    return {
        "q": _w((lambda *s: torch.randn(*s, dtype=torch.bfloat16) * 0.8)(B, Hq, Sq, D)),
        "k": _w((lambda *s: torch.randn(*s, dtype=torch.bfloat16) * 0.8)(B, Hkv, Sk, D)),
        "v": _w((lambda *s: torch.randn(*s, dtype=torch.bfloat16) * 0.05)(B, Hkv, Sk, D)),
    }

def reference(q, k, v):
    B, Hq, Sq, D = q.shape
    Hkv = k.shape[1]
    rep = Hq // Hkv
    k = (lambda x, n, axis: torch.repeat_interleave(x, n, dim=axis))(k, rep, axis=1)
    v = (lambda x, n, axis: torch.repeat_interleave(x, n, dim=axis))(v, rep, axis=1)
    scale = D ** -0.5
    scores = torch.einsum("bhqd,bhkd->bhqk", q, k) * scale
    p = _softmax(scores, axis=-1)
    return torch.einsum("bhqk,bhkd->bhqd", p, v)
```

```python
import sys, math

OPT = dict(stamp=False)
for a in sys.argv[2:]:
    k, v = a.split('=')
    OPT[k] = int(v)

NAME = 'standalone__gqa_softmax__near_ridge_kernel'


class I:
    __slots__ = ('t', 'k', 'r', 'w', 'c', 'cost')

    def __init__(self, t, k, r=(), w=(), c=(), cost=4):
        self.t = t
        self.k = k
        self.r = list(r)
        self.w = list(w)
        self.c = list(c)
        self.cost = cost


def vr(a, n=1):
    return [('v', a + i) for i in range(n)]


def ar(a, n=1):
    return [('a', a + i) for i in range(n)]


def rng(p, a, n):
    return '%s[%d:%d]' % (p, a, a + n - 1)


def O(qt, dt):
    return (qt * 4 + dt) * 16


def SB(b, qt):
    return 128 + (b * 2 + qt) * 16


FR = [192, 196, 200, 204]
KA = 208
VA = 216
VQO = 220
NEGM = 221
LACC = 225
TMP = 233
RCP = 248
VDK = 250
VDV = 251
VST = 252


def VRES(ks, dt):
    return (ks * 4 + dt) * 4


def QB(par, qt, s):
    return 128 + par * 64 + (qt * 8 + s) * 4


SQ, SK, SV, SO = 20, 24, 28, 32
S_W1K = 40
S_T = 41
S_C = 42
S_NC = 43
S_THR = 44
S_FLAGS = 45
S_QOFF = 46
S_T2 = 52

KBASE = 0
VBASE = 98304
STAGE = 65536

C_SCALE = math.log2(math.e) / math.sqrt(128.0)


def f32hex(x):
    import struct
    return '0x%08x' % struct.unpack('<I', struct.pack('<f', x))[0]


def mfma(d, a, b, c):
    ap, ab = a
    bp, bb = b
    cs = '0' if c is None else rng('v', c, 16)
    t = 'v_mfma_f32_32x32x16_bf16 %s, %s, %s, %s' % (rng('v', d, 16), rng(ap, ab, 4), rng(bp, bb, 4), cs)
    rr = [(ap, ab + i) for i in range(4)] + [(bp, bb + i) for i in range(4)]
    return I(t, 'mfma', r=rr, w=vr(d, 16), c=(vr(c, 16) if c is not None else []), cost=8)


def valu(t, r, w):
    return I(t, 'valu', r=r, w=w)


def trans(t, r, w):
    return I(t, 'trans', r=r, w=w, cost=8)


def salu(t):
    return I(t, 'salu')


pro = []
mf = []
fill = []


def addfill(pos, inst):
    fill.append((pos, len(fill), inst))


def P(i):
    pro.append(i)


P(salu('s_cmp_ge_u32 s2, 256'))
P(salu('s_cbranch_scc1 L_end'))
P(salu('s_load_dwordx4 s[4:7], s[0:1], 0'))
P(salu('s_load_dwordx4 s[8:11], s[0:1], 16'))
P(valu('v_lshrrev_b32 v1, 6, v0', vr(0), vr(1)))
P(valu('v_and_b32 v0, 63, v0', vr(0), vr(0)))
P(salu('s_nop 1'))
P(valu('v_readfirstlane_b32 s3, v1', vr(1), []))
P(salu('s_and_b32 s12, s2, 7'))
P(salu('s_lshr_b32 s13, s2, 5'))
P(salu('s_lshl_b32 s13, s13, 3'))
P(salu('s_add_u32 s12, s12, s13'))
P(salu('s_lshr_b32 s13, s2, 3'))
P(salu('s_and_b32 s13, s13, 3'))
P(salu('s_mul_i32 s14, s12, 98304'))
P(salu('s_mul_i32 s15, s12, 3072'))
P(salu('s_mul_i32 s16, s13, 768'))
P(salu('s_add_u32 s15, s15, s16'))
P(salu('s_mul_i32 s16, s3, 192'))
P(salu('s_add_u32 s15, s15, s16'))
P(salu('s_lshl_b32 s15, s15, 8'))
P(salu('s_lshl_b32 s%d, s3, 10' % S_W1K))
P(salu('s_mov_b32 s%d, %s' % (S_C, f32hex(C_SCALE))))
P(salu('s_mov_b32 s%d, %s' % (S_NC, f32hex(-C_SCALE))))
P(salu('s_mov_b32 s%d, %s' % (S_THR, f32hex(65536.0))))
P(salu('s_mov_b32 s%d, 0' % S_FLAGS))
for it in range(3):
    for qt in range(2):
        P(salu('s_mov_b32 s%d, %d' % (S_QOFF + it * 2 + qt, (it * 64 + qt * 32) * 256)))
P(valu('v_lshrrev_b32 v1, 5, v0', vr(0), vr(1)))
P(valu('v_and_b32 v2, 31, v0', vr(0), vr(2)))
P(valu('v_and_b32 v3, 15, v0', vr(0), vr(3)))
P(valu('v_lshrrev_b32 v5, 4, v0', vr(0), vr(5)))
P(valu('v_and_b32 v4, 1, v5', vr(5), vr(4)))
P(valu('v_lshlrev_b32 v6, 2, v5', vr(5), vr(6)))
P(valu('v_xor_b32 v7, v3, v6', vr(3) + vr(6), vr(7)))
P(valu('v_lshlrev_b32 v7, 4, v7', vr(7), vr(7)))
P(valu('v_lshlrev_b32 v8, 8, v5', vr(5), vr(8)))
P(valu('v_add_u32 v%d, v7, v8' % VDV, vr(7) + vr(8), vr(VDV)))
P(salu('s_lshl_b32 s%d, s3, 2' % S_T))
P(valu('v_add_u32 v6, s%d, v5' % S_T, vr(5), vr(6)))
P(valu('v_xor_b32 v7, v3, v6', vr(3) + vr(6), vr(7)))
P(valu('v_lshlrev_b32 v7, 4, v7', vr(7), vr(7)))
P(valu('v_add_u32 v%d, v7, v8' % VDK, vr(7) + vr(8), vr(VDK)))
P(valu('v_lshlrev_b32 v6, 8, v2', vr(2), vr(6)))
P(valu('v_lshlrev_b32 v7, 4, v1', vr(1), vr(7)))
P(valu('v_add_u32 v%d, v6, v7' % VQO, vr(6) + vr(7), vr(VQO)))
P(valu('v_xor_b32 v7, v1, v3', vr(1) + vr(3), vr(7)))
P(valu('v_lshlrev_b32 v7, 4, v7', vr(7), vr(7)))
P(valu('v_add_u32 v%d, v6, v7' % KA, vr(6) + vr(7), vr(KA)))
for s in range(1, 8):
    P(valu('v_xor_b32 v%d, %d, v%d' % (KA + s, 32 * s, KA), vr(KA), vr(KA + s)))
P(valu('v_lshrrev_b32 v6, 2, v3', vr(3), vr(6)))
P(valu('v_lshlrev_b32 v7, 2, v1', vr(1), vr(7)))
P(valu('v_add_u32 v7, v7, v6', vr(7) + vr(6), vr(7)))
P(valu('v_lshlrev_b32 v7, 8, v7', vr(7), vr(7)))
P(valu('v_lshlrev_b32 v8, 6, v6', vr(6), vr(8)))
P(valu('v_add_u32 v7, v7, v8', vr(7) + vr(8), vr(7)))
P(valu('v_lshlrev_b32 v8, 5, v4', vr(4), vr(8)))
P(valu('v_add_u32 v7, v7, v8', vr(7) + vr(8), vr(7)))
P(valu('v_and_b32 v8, 3, v3', vr(3), vr(8)))
P(valu('v_lshlrev_b32 v8, 3, v8', vr(8), vr(8)))
P(valu('v_add_u32 v7, v7, v8', vr(7) + vr(8), vr(7)))
for dt in range(4):
    P(valu('v_xor_b32 v8, %d, v7' % (dt << 6), vr(7), vr(8)))
    P(valu('v_add_u32 v%d, %d, v8' % (VA + dt, VBASE), vr(8), vr(VA + dt)))
    P(valu('v_add_u32 v%d, %d, v8' % (VST + dt, STAGE), vr(8), vr(VST + dt)))
P(salu('s_waitcnt lgkmcnt(0)'))
P(salu('s_add_u32 s%d, s4, s15' % SQ))
P(salu('s_addc_u32 s%d, s5, 0' % (SQ + 1)))
P(salu('s_mov_b32 s%d, %d' % (SQ + 2, 192 * 256)))
P(salu('s_mov_b32 s%d, 0x00020000' % (SQ + 3)))
P(salu('s_add_u32 s%d, s6, s14' % SK))
P(salu('s_addc_u32 s%d, s7, 0' % (SK + 1)))
P(salu('s_mov_b32 s%d, 98304' % (SK + 2)))
P(salu('s_mov_b32 s%d, 0x00020000' % (SK + 3)))
P(salu('s_add_u32 s%d, s8, s14' % SV))
P(salu('s_addc_u32 s%d, s9, 0' % (SV + 1)))
P(salu('s_mov_b32 s%d, 98304' % (SV + 2)))
P(salu('s_mov_b32 s%d, 0x00020000' % (SV + 3)))
P(salu('s_add_u32 s%d, s10, s15' % SO))
P(salu('s_addc_u32 s%d, s11, 0' % (SO + 1)))
P(salu('s_mov_b32 s%d, %d' % (SO + 2, 192 * 256)))
P(salu('s_mov_b32 s%d, 0x00020000' % (SO + 3)))


def dma(srd, voff, gofs, ldsofs, res):
    return [salu('s_add_u32 m0, s%d, %d' % (S_W1K, ldsofs)),
            salu('s_add_u32 s%d, s%d, %d' % (S_T, S_W1K, gofs)),
            I('buffer_load_dwordx4 v%d, s[%d:%d], s%d offen lds' % (voff, srd, srd + 3, S_T), 'dma',
              r=vr(voff), w=[('res', res)])]


def qload(it, qt, s):
    d = QB(it % 2, qt, s)
    return I('buffer_load_dwordx4 %s, v%d, s[%d:%d], s%d offen offset:%d' %
             (rng('a', d, 4), VQO, SQ, SQ + 3, S_QOFF + it * 2 + qt, 32 * s), 'vload', r=vr(VQO), w=ar(d, 4))


def sync(res):
    return I('s_barrier', 'sync', r=[('res', res)])


for m in range(16, 24):
    for x in dma(SV, VDV, 4096 * m, STAGE + 4096 * (m - 16), 'VS'):
        P(x)
for qt in range(2):
    for s in range(8):
        P(qload(0, qt, s))
for t in range(8):
    for m in (2 * t, 2 * t + 1):
        for x in dma(SK, VDK, 4096 * m, KBASE + 4096 * m, 'K%d' % t):
            P(x)
    for m in (2 * t, 2 * t + 1):
        for x in dma(SV, VDV, 4096 * m, VBASE + 4096 * m, 'V%d' % t):
            P(x)
P(sync('VS'))
for ks in range(8):
    for dt in range(4):
        for r in range(2):
            d = VRES(ks, dt) + 2 * r
            P(I('ds_read_b64_tr_b16 %s, v%d offset:%d' % (rng('a', d, 2), VST + dt, ks * 4096 + r * 2048), 'ds',
                r=vr(VST + dt), w=ar(d, 2)))
P(I('s_waitcnt lgkmcnt(0)', 'lgkm0'))
P(salu('s_barrier'))
for m in range(16, 24):
    for x in dma(SK, VDK, 4096 * m, KBASE + 4096 * m, 'K8'):
        P(x)

NT = 36
ph = {}
pv_base = {}
qk_base = {}
idx = 0
for n in range(-1, NT + 1):
    ph[n] = idx
    if n >= 1:
        pv_base[n - 1] = idx
        idx += 16
    if n + 1 <= NT - 1:
        qk_base[n + 1] = idx
        idx += 16
NM = idx


def pv_idx(m, ks, dt, qt):
    return pv_base[m] + ks * 8 + dt * 2 + qt


def qk_idx(m, s, qt):
    return qk_base[m] + s * 2 + qt


mf = [None] * NM
fragctr = [0]
LEAD = 7


def newfrag():
    f = FR[fragctr[0] % 4]
    fragctr[0] += 1
    return f


order = []
for n in range(-1, NT + 1):
    if n >= 1:
        order.append(('pv', n - 1))
    if n + 1 <= NT - 1:
        order.append(('qk', n + 1))

for kind, m in order:
    it, t = divmod(m, 12)
    if kind == 'qk':
        b = m % 2
        for s in range(8):
            f = newfrag()
            u = qk_idx(m, s, 0)
            pos = u - LEAD
            if it == 0 and s == 0 and t <= 8:
                addfill(pos - 0.3, sync('K%d' % t))
            if (t == 8) or (t == 0 and it > 0):
                addfill(pos - 0.1, valu('v_xor_b32 v%d, 0x10000, v%d' % (KA + s, KA + s), vr(KA + s), vr(KA + s)))
            off = (t % 8) * 8192
            addfill(pos, I('ds_read_b128 %s, v%d offset:%d' % (rng('v', f, 4), KA + s, off), 'ds',
                           r=vr(KA + s), w=vr(f, 4)))
            for qt in range(2):
                d = SB(b, qt)
                mf[qk_idx(m, s, qt)] = mfma(d, ('v', f), ('a', QB(it % 2, qt, s)), None if s == 0 else d)
    else:
        b = m % 2
        for ks in range(2):
            for dt in range(4):
                u = pv_idx(m, ks, dt, 0)
                if t < 8:
                    f = newfrag()
                    for r in range(2):
                        off = t * 8192 + ks * 4096 + r * 2048
                        addfill(u - LEAD, I('ds_read_b64_tr_b16 %s, v%d offset:%d' % (rng('v', f + 2 * r, 2), VA + dt, off),
                                            'ds', r=vr(VA + dt), w=vr(f + 2 * r, 2)))
                    a = ('v', f)
                else:
                    a = ('a', VRES((t - 8) * 2 + ks, dt))
                for qt in range(2):
                    d = O(qt, dt)
                    first = (t == 0 and ks == 0)
                    mf[pv_idx(m, ks, dt, qt)] = mfma(d, a, ('v', SB(b, qt) + 8 * ks), None if first else d)


def spread(items, lo, hi):
    tot = sum(i.cost for i in items)
    acc = 0
    for i in items:
        addfill(lo + (hi - lo) * acc / tot, i)
        acc += i.cost


sm_end = {}
for n in range(NT):
    it, t = divmod(n, 12)
    par = it % 2
    b = n % 2
    pre = []
    if t == 0:
        for qt in range(2):
            s0 = SB(b, qt)
            tt = TMP + qt * 6
            pre.append(valu('v_max3_f32 v%d, v%d, v%d, v%d' % (tt, s0, s0 + 1, s0 + 2), vr(s0, 3), vr(tt)))
            pre.append(valu('v_max3_f32 v%d, v%d, v%d, v%d' % (tt + 1, s0 + 3, s0 + 4, s0 + 5), vr(s0 + 3, 3), vr(tt + 1)))
            pre.append(valu('v_max3_f32 v%d, v%d, v%d, v%d' % (tt + 2, s0 + 6, s0 + 7, s0 + 8), vr(s0 + 6, 3), vr(tt + 2)))
            pre.append(valu('v_max3_f32 v%d, v%d, v%d, v%d' % (tt + 3, s0 + 9, s0 + 10, s0 + 11), vr(s0 + 9, 3), vr(tt + 3)))
            pre.append(valu('v_max3_f32 v%d, v%d, v%d, v%d' % (tt + 4, s0 + 12, s0 + 13, s0 + 14), vr(s0 + 12, 3), vr(tt + 4)))
        for qt in range(2):
            s0 = SB(b, qt)
            tt = TMP + qt * 6
            pre.append(valu('v_max3_f32 v%d, v%d, v%d, v%d' % (tt, tt, tt + 1, s0 + 15), vr(tt, 2) + vr(s0 + 15), vr(tt)))
            pre.append(valu('v_max3_f32 v%d, v%d, v%d, v%d' % (tt + 2, tt + 2, tt + 3, tt + 4), vr(tt + 2, 3), vr(tt + 2)))
        for qt in range(2):
            tt = TMP + qt * 6
            pre.append(valu('v_max_f32 v%d, v%d, v%d' % (tt, tt, tt + 2), vr(tt) + vr(tt + 2), vr(tt)))
        for qt in range(2):
            tt = TMP + qt * 6
            pre.append(valu('v_mov_b32 v%d, v%d' % (tt + 1, tt), vr(tt), vr(tt + 1)))
        for qt in range(2):
            tt = TMP + qt * 6
            pre.append(I('v_permlane32_swap_b32 v%d, v%d' % (tt, tt + 1), 'perm', r=vr(tt, 2), w=vr(tt, 2)))
        for qt in range(2):
            tt = TMP + qt * 6
            pre.append(valu('v_max_f32 v%d, v%d, v%d' % (tt, tt, tt + 1), vr(tt, 2), vr(tt)))
        for qt in range(2):
            tt = TMP + qt * 6
            nm = NEGM + par * 2 + qt
            pre.append(valu('v_mul_f32 v%d, s%d, v%d' % (nm, S_NC, tt), vr(tt), vr(nm)))
    elems = []
    for hf in range(2):
        for qt in range(2):
            for j in range(8):
                elems.append((hf, qt, j))

    def reg(e):
        hf, qt, j = e
        return SB(b, qt) + 8 * hf + j

    def f_fma(e):
        hf, qt, j = e
        r = reg(e)
        nm = NEGM + par * 2 + qt
        return valu('v_fma_f32 v%d, v%d, s%d, v%d' % (r, r, S_C, nm), vr(r) + vr(nm), vr(r))

    def f_exp(e):
        r = reg(e)
        return trans('v_exp_f32 v%d, v%d' % (r, r), vr(r), vr(r))

    def f_add(e):
        hf, qt, j = e
        r = reg(e)
        la = LACC + par * 4 + qt * 2 + (j & 1)
        if t == 0 and hf == 0 and j < 2:
            return valu('v_add_f32 v%d, 0, v%d' % (la, r), vr(r), vr(la))
        return valu('v_add_f32 v%d, v%d, v%d' % (la, la, r), vr(la) + vr(r), vr(la))

    def f_cvt(e):
        hf, qt, j = e
        r = reg(e)
        d = SB(b, qt) + 8 * hf + j // 2
        return valu('v_cvt_pk_bf16_f32 v%d, v%d, v%d' % (d, r - 1, r), vr(r - 1, 2), vr(d))

    seq = [[], []]
    allseq = []
    NE = len(elems)
    for st in range(-2, NE + 4):
        if 0 <= st + 2 < NE:
            allseq.append(('f', st + 2))
        if 0 <= st < NE:
            allseq.append(('e', st))
        if 0 <= st - 2 < NE:
            allseq.append(('a', st - 2))
        if 0 <= st - 3 < NE and (st - 3) % 2 == 1:
            allseq.append(('c', st - 3))
    items = []
    half0_last = 0
    for k, e in allseq:
        el = elems[e]
        ins = {'f': f_fma, 'e': f_exp, 'a': f_add, 'c': f_cvt}[k](el)
        items.append(ins)
        if k == 'c' and e == 15:
            half0_last = len(items)
    lo = qk_idx(n, 7, 1) + 2
    d0 = pv_idx(n, 0, 0, 0) - 1
    d1 = pv_idx(n, 1, 0, 0) - 2
    hi = min(lo + 31.5, d1)
    full = pre + items
    n0 = len(pre) + half0_last
    tot = sum(i.cost for i in full)
    c0 = sum(i.cost for i in full[:n0])
    mid = lo + (hi - lo) * c0 / tot
    if mid > d0 - 0.5:
        mid = d0 - 0.5
    spread(full[:n0], lo, mid)
    spread(full[n0:], mid, hi)
    sm_end[n] = hi

for it in range(3):
    m = 12 * it + 11
    par = it % 2
    pre = []
    for qt in range(2):
        la = LACC + par * 4 + qt * 2
        tt = TMP + 12 + qt * 2 - 0
        tt = TMP + 6 * 2 + qt
        pre.append(valu('v_add_f32 v%d, v%d, v%d' % (la, la, la + 1), vr(la, 2), vr(la)))
    for qt in range(2):
        la = LACC + par * 4 + qt * 2
        pre.append(valu('v_mov_b32 v%d, v%d' % (la + 1, la), vr(la), vr(la + 1)))
    for qt in range(2):
        la = LACC + par * 4 + qt * 2
        pre.append(I('v_permlane32_swap_b32 v%d, v%d' % (la, la + 1), 'perm', r=vr(la, 2), w=vr(la, 2)))
    for qt in range(2):
        la = LACC + par * 4 + qt * 2
        pre.append(valu('v_add_f32 v%d, v%d, v%d' % (la, la, la + 1), vr(la, 2), vr(la)))
    for qt in range(2):
        la = LACC + par * 4 + qt * 2
        pre.append(trans('v_rcp_f32 v%d, v%d' % (RCP + qt, la), vr(la), vr(RCP + qt)))
    la0 = LACC + par * 4
    la1 = LACC + par * 4 + 2
    pre.append(valu('v_cmp_ngt_f32 vcc, s%d, v%d' % (S_THR, la0), vr(la0), []))
    pre.append(valu('v_cmp_ngt_f32 s[%d:%d], s%d, v%d' % (S_T2, S_T2 + 1, S_THR, la1), vr(la1), []))
    pre.append(salu('s_nop 3'))
    pre.append(salu('s_or_b64 vcc, vcc, s[%d:%d]' % (S_T2, S_T2 + 1)))
    pre.append(salu('s_cselect_b32 s%d, %d, 0' % (S_T2, 1 << it)))
    pre.append(salu('s_or_b32 s%d, s%d, s%d' % (S_FLAGS, S_FLAGS, S_T2)))
    p0 = sm_end[m] + 0.2
    spread(pre, p0, p0 + 3)
    e0 = p0 + 3.1
    e0 = max(e0, pv_idx(m, 1, 0, 0) + 3)
    last = (it == 2)
    if not last:
        dl = pv_idx(m + 1, 0, 3, 1) - 1
    else:
        dl = NM + 5
    blocks = []
    for dt in range(4):
        for qt in range(2):
            o = O(qt, dt)
            blk = []
            for j in range(16):
                blk.append(valu('v_mul_f32 v%d, v%d, v%d' % (o + j, o + j, RCP + qt), vr(o + j) + vr(RCP + qt), vr(o + j)))
            for g2 in range(2):
                for j in range(4):
                    d = o + 8 * g2 + j
                    s = o + 8 * g2 + 2 * j
                    blk.append(valu('v_cvt_pk_bf16_f32 v%d, v%d, v%d' % (d, s, s + 1), vr(s, 2), vr(d)))
            for g2 in range(2):
                x = o + 8 * g2
                blk.append(I('v_permlane32_swap_b32 v%d, v%d' % (x, x + 2), 'perm', r=[('v', x), ('v', x + 2)], w=[('v', x), ('v', x + 2)]))
                blk.append(I('v_permlane32_swap_b32 v%d, v%d' % (x + 1, x + 3), 'perm', r=[('v', x + 1), ('v', x + 3)], w=[('v', x + 1), ('v', x + 3)]))
            for g2 in range(2):
                x = o + 8 * g2
                blk.append(I('buffer_store_dwordx4 %s, v%d, s[%d:%d], s%d offen offset:%d' %
                             (rng('v', x, 4), VQO, SO, SO + 3, S_QOFF + it * 2 + qt, 64 * dt + 32 * g2), 'vstore',
                             r=vr(x, 4) + vr(VQO)))
            blocks.append((dt, qt, blk))
    span = dl - e0
    for j, (dt, qt, blk) in enumerate(blocks):
        lo = e0 + span * j / 8
        hi = e0 + span * (j + 1) / 8 - 0.01
        e_j = pv_idx(m, 1, dt, qt) + 3
        lo = max(lo, e_j)
        if not last:
            d_j = pv_idx(m + 1, 0, dt, qt) - 1
            assert hi <= d_j + 0.001, (hi, d_j)
        hi = max(hi, lo)
        spread(blk, lo, hi)

for it in range(2):
    items = [qload(it + 1, qt, s) for qt in range(2) for s in range(8)]
    spread(items, ph[12 * it + 2] + 1, ph[12 * it + 6])

fill.sort(key=lambda x: (x[0], x[1]))
prog = list(pro)
fi = 0
while fi < len(fill) and fill[fi][0] < 0:
    prog.append(fill[fi][2])
    fi += 1
for g in range(NM):
    prog.append(mf[g])
    while fi < len(fill) and fill[fi][0] < g + 1 and (g < NM - 1):
        prog.append(fill[fi][2])
        fi += 1
while fi < len(fill):
    prog.append(fill[fi][2])
    fi += 1


def insert_waits(prog):
    out = []
    lq = []
    vq = []
    for ins in prog:
        touched = set(ins.r) | set(ins.w) | set(ins.c)
        need_l = None
        for i, s in enumerate(lq):
            if s & touched:
                need_l = i
        need_v = None
        for i, s in enumerate(vq):
            if s & touched:
                need_v = i
        parts = []
        if need_v is not None:
            n = len(vq) - 1 - need_v
            n = min(n, 63)
            parts.append('vmcnt(%d)' % n)
            vq = vq[len(vq) - n:] if n > 0 else []
        if need_l is not None:
            n = len(lq) - 1 - need_l
            n = min(n, 15)
            parts.append('lgkmcnt(%d)' % n)
            lq = lq[len(lq) - n:] if n > 0 else []
        if parts:
            out.append(I('s_waitcnt ' + ' '.join(parts), 'wait'))
        out.append(ins)
        if ins.k == 'ds':
            lq.append(set(ins.w))
        elif ins.k == 'lgkm0':
            lq = []
        elif ins.k in ('vload', 'dma'):
            vq.append(set(ins.w))
        elif ins.k == 'vstore':
            vq.append(set())
    return out


def insert_nops(prog):
    out = []
    pos = 0
    lastw = {}
    lastc = {}
    laststore = {}
    for ins in prog:
        need = 0
        k = ins.k
        if k == 'mfma':
            dkey = ins.w[0]
            for r in ins.r:
                if r in lastw:
                    p, wk, _ = lastw[r]
                    ws = pos - p - 1
                    if wk in ('valu', 'trans', 'perm'):
                        need = max(need, 2 - ws)
                    elif wk == 'mfma':
                        need = max(need, 12 - ws)
            for r in ins.c:
                if r in lastw:
                    p, wk, dk = lastw[r]
                    ws = pos - p - 1
                    if wk in ('valu', 'trans', 'perm'):
                        need = max(need, 2 - ws)
                    elif wk == 'mfma' and dk != ins.c[0]:
                        need = max(need, 10 - ws)
        elif k in ('valu', 'trans', 'perm', 'ds', 'vload', 'vstore', 'dma'):
            for r in list(ins.r) + list(ins.w):
                if r in lastw:
                    p, wk, _ = lastw[r]
                    ws = pos - p - 1
                    if wk == 'mfma':
                        need = max(need, 12 - ws)
            if k in ('valu', 'perm'):
                for r in ins.r:
                    if r in lastw and lastw[r][1] == 'trans':
                        need = max(need, 1 - (pos - lastw[r][0] - 1))
            if k == 'perm':
                for r in ins.r:
                    if r in lastw and lastw[r][1] in ('valu', 'trans', 'perm'):
                        need = max(need, 2 - (pos - lastw[r][0] - 1))
            if k in ('valu', 'trans', 'perm'):
                for r in ins.w:
                    if r in lastc:
                        need = max(need, 7 - (pos - lastc[r] - 1))
                    if r in laststore:
                        need = max(need, 2 - (pos - laststore[r] - 1))
        if need > 0:
            out.append(I('s_nop %d' % (need - 1), 'salu'))
            pos += need
        out.append(ins)
        if k == 'salu' and ins.t.startswith('s_nop'):
            pos += int(ins.t.split()[1]) + 1
        else:
            pos += 1
        for r in ins.w:
            lastw[r] = (pos - 1, k, ins.w[0] if k == 'mfma' else None)
        if k == 'mfma':
            for r in ins.c:
                lastc[r] = pos - 1
        if k == 'vstore':
            for r in ins.r:
                laststore[r] = pos - 1
    return out


prog = insert_waits(prog)
prog = insert_nops(prog)

slow = []


def L(t):
    slow.append(t)


def slow_qk(b, koff_imm):
    for s in range(8):
        L('  ds_read_b128 %s, v%d offset:%d' % (rng('v', FR[s % 4], 4), TMP + s, koff_imm))
        L('  s_waitcnt lgkmcnt(0)')
        for qt in range(2):
            d = SB(b, qt)
            cs = '0' if s == 0 else rng('v', d, 16)
            L('  v_mfma_f32_32x32x16_bf16 %s, %s, %s, %s' % (rng('v', d, 16), rng('v', FR[s % 4], 4), rng('a', QB(0, qt, s), 4), cs))
    L('  s_nop 15')


def slow_softmax_pv(vsrc):
    for qt in range(2):
        s0 = SB(0, qt)
        for j in range(16):
            L('  v_fma_f32 v%d, v%d, s%d, v%d' % (s0 + j, s0 + j, S_C, NEGM + qt))
        for j in range(16):
            L('  v_exp_f32 v%d, v%d' % (s0 + j, s0 + j))
        L('  s_nop 1')
        for j in range(16):
            L('  v_add_f32 v%d, v%d, v%d' % (LACC + 2 * qt, LACC + 2 * qt, s0 + j))
        for hf in range(2):
            for j in range(4):
                L('  v_cvt_pk_bf16_f32 v%d, v%d, v%d' % (s0 + 8 * hf + j, s0 + 8 * hf + 2 * j, s0 + 8 * hf + 2 * j + 1))
    L('  s_nop 2')
    for ks in range(2):
        for dt in range(4):
            if vsrc is None:
                f = FR[dt]
                for r in range(2):
                    L('  ds_read_b64_tr_b16 %s, v%d offset:%d' % (rng('v', f + 2 * r, 2), VST + dt, ks * 4096 + r * 2048))
                L('  s_waitcnt lgkmcnt(0)')
                a = rng('v', f, 4)
            else:
                a = rng('a', VRES(vsrc * 2 + ks, dt), 4)
            for qt in range(2):
                d = O(qt, dt)
                L('  v_mfma_f32_32x32x16_bf16 %s, %s, %s, %s' % (rng('v', d, 16), a, rng('v', SB(0, qt) + 8 * ks, 4), rng('v', d, 16)))
    L('  s_nop 15')


S_IT = 54
S_CNT = 55
S_QO0 = 56
S_QO1 = 57
L('  s_waitcnt vmcnt(0) lgkmcnt(0)')
L('  s_cmp_eq_u32 s%d, 0' % S_FLAGS)
L('  s_cbranch_scc1 L_end')
L('  s_nop 15')
L('  s_nop 15')
L('  s_mov_b32 s%d, 0' % S_IT)
L('L_slow_it:')
L('  s_lshr_b32 s%d, s%d, s%d' % (S_T, S_FLAGS, S_IT))
L('  s_and_b32 s%d, s%d, 1' % (S_T, S_T))
L('  s_cmp_eq_u32 s%d, 0' % S_T)
L('  s_cbranch_scc1 L_slow_next')
L('  s_lshl_b32 s%d, s%d, 14' % (S_QO0, S_IT))
L('  s_add_u32 s%d, s%d, 8192' % (S_QO1, S_QO0))
for qt in range(2):
    for s in range(8):
        L('  buffer_load_dwordx4 %s, v%d, s[%d:%d], s%d offen offset:%d' %
          (rng('a', QB(0, qt, s), 4), VQO, SQ, SQ + 3, S_QO0 + qt, 32 * s))
for s in range(8):
    L('  v_and_b32 v%d, 0xffff, v%d' % (TMP + s, KA + s))
L('  v_mov_b32 v%d, 0xff800000' % (NEGM + 2))
L('  v_mov_b32 v%d, 0xff800000' % (NEGM + 3))
L('  s_waitcnt vmcnt(0)')
L('  s_mov_b32 s%d, 0' % S_CNT)
L('L_slow_p1:')
slow_qk(0, 0)
for qt in range(2):
    s0 = SB(0, qt)
    for j in range(16):
        L('  v_max_f32 v%d, v%d, v%d' % (NEGM + 2 + qt, NEGM + 2 + qt, s0 + j))
for s in range(8):
    L('  v_add_u32 v%d, 8192, v%d' % (TMP + s, TMP + s))
L('  s_add_u32 s%d, s%d, 1' % (S_CNT, S_CNT))
L('  s_cmp_lt_u32 s%d, 12' % S_CNT)
L('  s_cbranch_scc1 L_slow_p1')
for qt in range(2):
    x = NEGM + 2 + qt
    L('  v_mov_b32 v%d, v%d' % (RCP, x))
    L('  s_nop 2')
    L('  v_permlane32_swap_b32 v%d, v%d' % (x, RCP))
    L('  s_nop 1')
    L('  v_max_f32 v%d, v%d, v%d' % (x, x, RCP))
    L('  v_mul_f32 v%d, s%d, v%d' % (NEGM + qt, S_NC, x))
    L('  v_mov_b32 v%d, 0' % (LACC + 2 * qt))
for j in range(128):
    L('  v_mov_b32 v%d, 0' % j)
for s in range(8):
    L('  v_and_b32 v%d, 0xffff, v%d' % (TMP + s, KA + s))
for dt in range(4):
    L('  v_mov_b32 v%d, v%d' % (VST + dt, VA + dt))
L('  s_mov_b32 s%d, 0' % S_CNT)
L('L_slow_p2:')
slow_qk(0, 0)
slow_softmax_pv(None)
for s in range(8):
    L('  v_add_u32 v%d, 8192, v%d' % (TMP + s, TMP + s))
for dt in range(4):
    L('  v_add_u32 v%d, 8192, v%d' % (VST + dt, VST + dt))
L('  s_add_u32 s%d, s%d, 1' % (S_CNT, S_CNT))
L('  s_cmp_lt_u32 s%d, 8' % S_CNT)
L('  s_cbranch_scc1 L_slow_p2')
for t in range(4):
    slow_qk(0, t * 8192)
    slow_softmax_pv(t)
for qt in range(2):
    la = LACC + 2 * qt
    L('  v_mov_b32 v%d, v%d' % (la + 1, la))
    L('  s_nop 2')
    L('  v_permlane32_swap_b32 v%d, v%d' % (la, la + 1))
    L('  s_nop 1')
    L('  v_add_f32 v%d, v%d, v%d' % (la, la, la + 1))
    L('  v_rcp_f32 v%d, v%d' % (RCP + qt, la))
L('  s_nop 1')
for dt in range(4):
    for qt in range(2):
        o = O(qt, dt)
        for j in range(16):
            L('  v_mul_f32 v%d, v%d, v%d' % (o + j, o + j, RCP + qt))
        for g2 in range(2):
            for j in range(4):
                L('  v_cvt_pk_bf16_f32 v%d, v%d, v%d' % (o + 8 * g2 + j, o + 8 * g2 + 2 * j, o + 8 * g2 + 2 * j + 1))
        L('  s_nop 2')
        for g2 in range(2):
            x = o + 8 * g2
            L('  v_permlane32_swap_b32 v%d, v%d' % (x, x + 2))
            L('  v_permlane32_swap_b32 v%d, v%d' % (x + 1, x + 3))
        L('  s_nop 1')
        for g2 in range(2):
            x = o + 8 * g2
            L('  buffer_store_dwordx4 %s, v%d, s[%d:%d], s%d offen offset:%d' %
              (rng('v', x, 4), VQO, SO, SO + 3, S_QO0 + qt, 64 * dt + 32 * g2))
L('  s_waitcnt vmcnt(0)')
L('L_slow_next:')
L('  s_add_u32 s%d, s%d, 1' % (S_IT, S_IT))
L('  s_cmp_lt_u32 s%d, 3' % S_IT)
L('  s_cbranch_scc1 L_slow_it')

hdr = open('standalone__gqa_softmax__near_ridge.s.ref').read().split('\n')
out = []
for ln in hdr:
    if ln.startswith('; @launch'):
        out.append('; @launch grid=(256,1,1) block=(256,1,1) lds=163840')
        break
    out.append(ln)
out.append('.amdgcn_target "amdgcn-amd-amdhsa--gfx950"')
out.append('.text')
out.append('.globl %s' % NAME)
out.append('.p2align 8')
out.append('.type %s,@function' % NAME)
out.append('%s:' % NAME)
for ins in prog:
    out.append('  ' + ins.t)
out.extend(slow)
out.append('L_end:')
out.append('  s_endpgm')
out.append('.section .rodata,"a"')
out.append('.p2align 6')
out.append('.amdhsa_kernel %s' % NAME)
out.append('  .amdhsa_next_free_vgpr 512')
out.append('  .amdhsa_next_free_sgpr 64')
out.append('  .amdhsa_accum_offset 256')
out.append('  .amdhsa_group_segment_fixed_size 0')
out.append('  .amdhsa_kernarg_size 48')
out.append('  .amdhsa_user_sgpr_count 2')
out.append('  .amdhsa_user_sgpr_kernarg_segment_ptr 1')
out.append('  .amdhsa_system_sgpr_workgroup_id_x 1')
out.append('.end_amdhsa_kernel')
open(sys.argv[1], 'w').write('\n'.join(out) + '\n')
nn = sum(1 for i in prog if i.t.startswith('s_nop'))
nw = sum(1 for i in prog if i.t.startswith('s_waitcnt'))
print('instructions', len(prog), 'mfma', NM, 'nops', nn, 'waits', nw)
```

```python
import sys, math

OPT = dict(nearly=2, qnt=1, kvnt=0, rot=1, stash=1, pst2=0, pst=0, xcc=0, stamp=False, nostore=0, prog=0, dist=3)
for a in sys.argv[2:]:
    k, v = a.split('=')
    OPT[k] = int(v)

NAME = 'standalone__gqa_softmax__near_ridge_kernel'


class I:
    __slots__ = ('t', 'k', 'r', 'w', 'c', 'cost')

    def __init__(self, t, k, r=(), w=(), c=(), cost=4):
        self.t = t
        self.k = k
        self.r = list(r)
        self.w = list(w)
        self.c = list(c)
        self.cost = cost


def vr(a, n=1):
    return [('v', a + i) for i in range(n)]


def ar(a, n=1):
    return [('a', a + i) for i in range(n)]


def rng(p, a, n):
    return '%s[%d:%d]' % (p, a, a + n - 1)


def O(qt, dt):
    return (qt * 4 + dt) * 16


def SB(b, qt):
    return 128 + (b * 2 + qt) * 16


FR = [192, 196, 200, 204]
KA = 208
VA = 216
VQO = 220
NEGM = 221
LACC = 225
TMP = 233
RCP = 248
VDK = 250
VDV = 251
VST = 252


def VRES(ks, dt):
    return (ks * 4 + dt) * 4


def QB(par, qt, s):
    return 128 + par * 64 + (qt * 8 + s) * 4


SQ, SK, SV, SO = 20, 24, 28, 32
S_W1K = 40
S_T = 41
S_C = 42
S_NC = 43
S_THR = 44
S_FLAGS = 45
S_QOFF = 46
S_T2 = 38
S_TOFF = 52

KBASE = 0
VBASE = 98304
STAGE = 65536

C_SCALE = math.log2(math.e) / math.sqrt(128.0)


def f32hex(x):
    import struct
    return '0x%08x' % struct.unpack('<I', struct.pack('<f', x))[0]


def mfma(d, a, b, c):
    ap, ab = a
    bp, bb = b
    cs = '0' if c is None else rng('v', c, 16)
    t = 'v_mfma_f32_32x32x16_bf16 %s, %s, %s, %s' % (rng('v', d, 16), rng(ap, ab, 4), rng(bp, bb, 4), cs)
    rr = [(ap, ab + i) for i in range(4)] + [(bp, bb + i) for i in range(4)]
    return I(t, 'mfma', r=rr, w=vr(d, 16), c=(vr(c, 16) if c is not None else []), cost=8)


def valu(t, r, w):
    return I(t, 'valu', r=r, w=w)


def trans(t, r, w):
    return I(t, 'trans', r=r, w=w, cost=8)


def salu(t):
    return I(t, 'salu')


pro = []
mf = []
fill = []


def addfill(pos, inst):
    fill.append((pos, len(fill), inst))


def P(i):
    pro.append(i)


P(salu('s_cmp_ge_u32 s2, 256'))
P(salu('s_cbranch_scc1 L_end'))
P(salu('s_load_dwordx4 s[4:7], s[0:1], 0'))
P(salu('s_load_dwordx4 s[8:11], s[0:1], 16'))
P(valu('v_lshrrev_b32 v1, 6, v0', vr(0), vr(1)))
P(valu('v_and_b32 v0, 63, v0', vr(0), vr(0)))
P(salu('s_nop 1'))
P(valu('v_readfirstlane_b32 s3, v1', vr(1), []))
P(salu('s_and_b32 s12, s2, 7'))
P(salu('s_lshr_b32 s13, s2, 5'))
P(salu('s_lshl_b32 s13, s13, 3'))
P(salu('s_add_u32 s12, s12, s13'))
P(salu('s_lshr_b32 s13, s2, 3'))
P(salu('s_and_b32 s13, s13, 3'))
P(salu('s_mul_i32 s14, s12, 98304'))
P(salu('s_mul_i32 s15, s12, 3072'))
P(salu('s_mul_i32 s16, s13, 768'))
P(salu('s_add_u32 s15, s15, s16'))
P(salu('s_mul_i32 s16, s3, 192'))
P(salu('s_add_u32 s15, s15, s16'))
P(salu('s_lshl_b32 s15, s15, 8'))
P(salu('s_lshl_b32 s%d, s3, 10' % S_W1K))
P(salu('s_mul_i32 s16, s13, %d' % (3 if OPT['rot'] else 0)))
for t in range(12):
    P(salu('s_add_u32 s17, s16, %d' % t))
    P(salu('s_sub_u32 s18, s17, 12'))
    P(salu('s_cmp_ge_u32 s17, 12'))
    P(salu('s_cselect_b32 s17, s18, s17'))
    P(salu('s_lshl_b32 s17, s17, 13'))
    P(salu('s_add_u32 s%d, s17, s%d' % (S_TOFF + t, S_W1K)))
P(salu('s_mov_b32 s%d, %s' % (S_C, f32hex(C_SCALE))))
P(salu('s_mov_b32 s%d, %s' % (S_NC, f32hex(-C_SCALE))))
P(salu('s_mov_b32 s%d, %s' % (S_THR, f32hex(65536.0))))
P(salu('s_mov_b32 s%d, 0' % S_FLAGS))
for it in range(3):
    for qt in range(2):
        P(salu('s_mov_b32 s%d, %d' % (S_QOFF + it * 2 + qt, (it * 64 + qt * 32) * 256)))
P(valu('v_lshrrev_b32 v1, 5, v0', vr(0), vr(1)))
P(valu('v_and_b32 v2, 31, v0', vr(0), vr(2)))
P(valu('v_and_b32 v3, 15, v0', vr(0), vr(3)))
P(valu('v_lshrrev_b32 v5, 4, v0', vr(0), vr(5)))
P(valu('v_and_b32 v4, 1, v5', vr(5), vr(4)))
P(valu('v_lshlrev_b32 v6, 2, v5', vr(5), vr(6)))
P(valu('v_xor_b32 v7, v3, v6', vr(3) + vr(6), vr(7)))
P(valu('v_lshlrev_b32 v7, 4, v7', vr(7), vr(7)))
P(valu('v_lshlrev_b32 v8, 8, v5', vr(5), vr(8)))
P(valu('v_add_u32 v%d, v7, v8' % VDV, vr(7) + vr(8), vr(VDV)))
P(salu('s_lshl_b32 s%d, s3, 2' % S_T))
P(valu('v_add_u32 v6, s%d, v5' % S_T, vr(5), vr(6)))
P(valu('v_xor_b32 v7, v3, v6', vr(3) + vr(6), vr(7)))
P(valu('v_lshlrev_b32 v7, 4, v7', vr(7), vr(7)))
P(valu('v_add_u32 v%d, v7, v8' % VDK, vr(7) + vr(8), vr(VDK)))
P(valu('v_lshlrev_b32 v6, 8, v2', vr(2), vr(6)))
P(valu('v_lshlrev_b32 v7, 4, v1', vr(1), vr(7)))
P(valu('v_add_u32 v%d, v6, v7' % VQO, vr(6) + vr(7), vr(VQO)))
P(valu('v_xor_b32 v7, v1, v3', vr(1) + vr(3), vr(7)))
P(valu('v_lshlrev_b32 v7, 4, v7', vr(7), vr(7)))
P(valu('v_add_u32 v%d, v6, v7' % KA, vr(6) + vr(7), vr(KA)))
for s in range(1, 8):
    P(valu('v_xor_b32 v%d, %d, v%d' % (KA + s, 32 * s, KA), vr(KA), vr(KA + s)))
P(valu('v_lshrrev_b32 v6, 2, v3', vr(3), vr(6)))
P(valu('v_lshlrev_b32 v7, 2, v1', vr(1), vr(7)))
P(valu('v_add_u32 v7, v7, v6', vr(7) + vr(6), vr(7)))
P(valu('v_lshlrev_b32 v7, 8, v7', vr(7), vr(7)))
P(valu('v_lshlrev_b32 v8, 6, v6', vr(6), vr(8)))
P(valu('v_add_u32 v7, v7, v8', vr(7) + vr(8), vr(7)))
P(valu('v_lshlrev_b32 v8, 5, v4', vr(4), vr(8)))
P(valu('v_add_u32 v7, v7, v8', vr(7) + vr(8), vr(7)))
P(valu('v_and_b32 v8, 3, v3', vr(3), vr(8)))
P(valu('v_lshlrev_b32 v8, 3, v8', vr(8), vr(8)))
P(valu('v_add_u32 v7, v7, v8', vr(7) + vr(8), vr(7)))
for dt in range(4):
    P(valu('v_xor_b32 v8, %d, v7' % (dt << 6), vr(7), vr(8)))
    P(valu('v_add_u32 v%d, %d, v8' % (VA + dt, VBASE), vr(8), vr(VA + dt)))
    P(valu('v_add_u32 v%d, %d, v8' % (VST + dt, STAGE), vr(8), vr(VST + dt)))
P(salu('s_waitcnt lgkmcnt(0)'))
P(salu('s_add_u32 s%d, s4, s15' % SQ))
P(salu('s_addc_u32 s%d, s5, 0' % (SQ + 1)))
P(salu('s_mov_b32 s%d, %d' % (SQ + 2, 192 * 256)))
P(salu('s_mov_b32 s%d, 0x00020000' % (SQ + 3)))
P(salu('s_add_u32 s%d, s6, s14' % SK))
P(salu('s_addc_u32 s%d, s7, 0' % (SK + 1)))
P(salu('s_mov_b32 s%d, 98304' % (SK + 2)))
P(salu('s_mov_b32 s%d, 0x00020000' % (SK + 3)))
P(salu('s_add_u32 s%d, s8, s14' % SV))
P(salu('s_addc_u32 s%d, s9, 0' % (SV + 1)))
P(salu('s_mov_b32 s%d, 98304' % (SV + 2)))
P(salu('s_mov_b32 s%d, 0x00020000' % (SV + 3)))
P(salu('s_add_u32 s%d, s10, s15' % SO))
P(salu('s_addc_u32 s%d, s11, 0' % (SO + 1)))
P(salu('s_mov_b32 s%d, %d' % (SO + 2, 192 * 256)))
P(salu('s_mov_b32 s%d, 0x00020000' % (SO + 3)))


def dma(srd, voff, t, hf, ldsofs, res):
    return [salu('s_add_u32 m0, s%d, %d' % (S_W1K, ldsofs)),
            salu('s_add_u32 s%d, s%d, %d' % (S_T, S_TOFF + t, 4096 * hf)),
            I('buffer_load_dwordx4 v%d, s[%d:%d], s%d offen%s lds' % (voff, srd, srd + 3, S_T, ' nt' if OPT['kvnt'] else ''), 'dma',
              r=vr(voff), w=[('res', res)])]


def qload(it, qt, s):
    d = QB(it % 2, qt, s)
    return I('buffer_load_dwordx4 %s, v%d, s[%d:%d], s%d offen offset:%d' %
             (rng('a', d, 4), VQO, SQ, SQ + 3, S_QOFF + it * 2 + qt, 32 * s) + (' nt' if OPT['qnt'] else ''), 'vload', r=vr(VQO), w=ar(d, 4))


def sync(res):
    return I('s_barrier', 'sync', r=[('res', res)])


for qt in range(2):
    for s in range(8):
        P(qload(0, qt, s))


def kv_dma(t):
    r = []
    for hf in range(2):
        r += dma(SK, VDK, t, hf, KBASE + 8192 * t + 4096 * hf, 'K%d' % t)
    for hf in range(2):
        r += dma(SV, VDV, t, hf, VBASE + 8192 * t + 4096 * hf, 'V%d' % t)
    return r


NEARLY = OPT['nearly']
for t in range(NEARLY):
    for x in kv_dma(t):
        P(x)
vs_dma = []
for t in range(8, 12):
    for hf in range(2):
        vs_dma += dma(SV, VDV, t, hf, STAGE + 8192 * (t - 8) + 4096 * hf, 'VS')
stage_reads = []
for ks in range(8):
    for dt in range(4):
        for r in range(2):
            d = VRES(ks, dt) + 2 * r
            stage_reads.append(I('ds_read_b64_tr_b16 %s, v%d offset:%d' % (rng('a', d, 2), VST + dt, ks * 4096 + r * 2048), 'ds',
                                 r=vr(VST + dt), w=ar(d, 2)))
k8_dma = []
for t in range(8, 12):
    for hf in range(2):
        k8_dma += dma(SK, VDK, t, hf, KBASE + 8192 * t + 4096 * hf, 'K8')

NT = 36
ph = {}
pv_base = {}
qk_base = {}
idx = 0
for n in range(-1, NT + 1):
    ph[n] = idx
    if n >= 1:
        pv_base[n - 1] = idx
        idx += 16
    if n + 1 <= NT - 1:
        qk_base[n + 1] = idx
        idx += 16
NM = idx


def pv_idx(m, ks, dt, qt):
    return pv_base[m] + ks * 8 + dt * 2 + qt


def qk_idx(m, s, qt):
    return qk_base[m] + s * 2 + qt


mf = [None] * NM
fragctr = [0]
LEAD = 7


def newfrag():
    f = FR[fragctr[0] % 4]
    fragctr[0] += 1
    return f


order = []
for n in range(-1, NT + 1):
    if n >= 1:
        order.append(('pv', n - 1))
    if n + 1 <= NT - 1:
        order.append(('qk', n + 1))

for kind, m in order:
    it, t = divmod(m, 12)
    if kind == 'qk':
        b = m % 2
        for s in range(8):
            f = newfrag()
            u = qk_idx(m, s, 0)
            pos = u - LEAD
            if it == 0 and s == 0 and t <= 8:
                addfill(pos - 0.3, sync('K%d' % t))
            if (t == 8) or (t == 0 and it > 0):
                addfill(pos - 0.1, valu('v_xor_b32 v%d, 0x10000, v%d' % (KA + s, KA + s), vr(KA + s), vr(KA + s)))
            off = (t % 8) * 8192
            addfill(pos, I('ds_read_b128 %s, v%d offset:%d' % (rng('v', f, 4), KA + s, off), 'ds',
                           r=vr(KA + s), w=vr(f, 4)))
            for qt in range(2):
                d = SB(b, qt)
                mf[qk_idx(m, s, qt)] = mfma(d, ('v', f), ('a', QB(it % 2, qt, s)), None if s == 0 else d)
    else:
        b = m % 2
        for ks in range(2):
            for dt in range(4):
                u = pv_idx(m, ks, dt, 0)
                if t < 8:
                    f = newfrag()
                    for r in range(2):
                        off = t * 8192 + ks * 4096 + r * 2048
                        addfill(u - LEAD, I('ds_read_b64_tr_b16 %s, v%d offset:%d' % (rng('v', f + 2 * r, 2), VA + dt, off),
                                            'ds', r=vr(VA + dt), w=vr(f + 2 * r, 2)))
                    a = ('v', f)
                else:
                    a = ('a', VRES((t - 8) * 2 + ks, dt))
                for qt in range(2):
                    d = O(qt, dt)
                    first = (t == 0 and ks == 0)
                    mf[pv_idx(m, ks, dt, qt)] = mfma(d, a, ('v', SB(b, qt) + 8 * ks), None if first else d)


def spread(items, lo, hi):
    tot = sum(i.cost for i in items)
    acc = 0
    for i in items:
        addfill(lo + (hi - lo) * acc / tot, i)
        acc += i.cost


sm_end = {}
for n in range(NT):
    it, t = divmod(n, 12)
    par = it % 2
    b = n % 2
    pre = []
    if t == 0:
        for qt in range(2):
            s0 = SB(b, qt)
            tt = TMP + qt * 6
            pre.append(valu('v_max3_f32 v%d, v%d, v%d, v%d' % (tt, s0, s0 + 1, s0 + 2), vr(s0, 3), vr(tt)))
            pre.append(valu('v_max3_f32 v%d, v%d, v%d, v%d' % (tt + 1, s0 + 3, s0 + 4, s0 + 5), vr(s0 + 3, 3), vr(tt + 1)))
            pre.append(valu('v_max3_f32 v%d, v%d, v%d, v%d' % (tt + 2, s0 + 6, s0 + 7, s0 + 8), vr(s0 + 6, 3), vr(tt + 2)))
            pre.append(valu('v_max3_f32 v%d, v%d, v%d, v%d' % (tt + 3, s0 + 9, s0 + 10, s0 + 11), vr(s0 + 9, 3), vr(tt + 3)))
            pre.append(valu('v_max3_f32 v%d, v%d, v%d, v%d' % (tt + 4, s0 + 12, s0 + 13, s0 + 14), vr(s0 + 12, 3), vr(tt + 4)))
        for qt in range(2):
            s0 = SB(b, qt)
            tt = TMP + qt * 6
            pre.append(valu('v_max3_f32 v%d, v%d, v%d, v%d' % (tt, tt, tt + 1, s0 + 15), vr(tt, 2) + vr(s0 + 15), vr(tt)))
            pre.append(valu('v_max3_f32 v%d, v%d, v%d, v%d' % (tt + 2, tt + 2, tt + 3, tt + 4), vr(tt + 2, 3), vr(tt + 2)))
        for qt in range(2):
            tt = TMP + qt * 6
            pre.append(valu('v_max_f32 v%d, v%d, v%d' % (tt, tt, tt + 2), vr(tt) + vr(tt + 2), vr(tt)))
        for qt in range(2):
            tt = TMP + qt * 6
            pre.append(valu('v_mov_b32 v%d, v%d' % (tt + 1, tt), vr(tt), vr(tt + 1)))
        for qt in range(2):
            tt = TMP + qt * 6
            pre.append(I('v_permlane32_swap_b32 v%d, v%d' % (tt, tt + 1), 'perm', r=vr(tt, 2), w=vr(tt, 2)))
        for qt in range(2):
            tt = TMP + qt * 6
            pre.append(valu('v_max_f32 v%d, v%d, v%d' % (tt, tt, tt + 1), vr(tt, 2), vr(tt)))
        for qt in range(2):
            tt = TMP + qt * 6
            nm = NEGM + par * 2 + qt
            pre.append(valu('v_mul_f32 v%d, s%d, v%d' % (nm, S_NC, tt), vr(tt), vr(nm)))
    elems = []
    for hf in range(2):
        for qt in range(2):
            for j in range(8):
                elems.append((hf, qt, j))

    def reg(e):
        hf, qt, j = e
        return SB(b, qt) + 8 * hf + j

    def f_fma(e):
        hf, qt, j = e
        r = reg(e)
        nm = NEGM + par * 2 + qt
        return valu('v_fma_f32 v%d, v%d, s%d, v%d' % (r, r, S_C, nm), vr(r) + vr(nm), vr(r))

    def f_exp(e):
        r = reg(e)
        return trans('v_exp_f32 v%d, v%d' % (r, r), vr(r), vr(r))

    def f_add(e):
        hf, qt, j = e
        r = reg(e)
        la = LACC + par * 4 + qt * 2 + (j & 1)
        if t == 0 and hf == 0 and j < 2:
            return valu('v_add_f32 v%d, 0, v%d' % (la, r), vr(r), vr(la))
        return valu('v_add_f32 v%d, v%d, v%d' % (la, la, r), vr(la) + vr(r), vr(la))

    def f_cvt(e):
        hf, qt, j = e
        r = reg(e)
        d = SB(b, qt) + 8 * hf + j // 2
        return valu('v_cvt_pk_bf16_f32 v%d, v%d, v%d' % (d, r - 1, r), vr(r - 1, 2), vr(d))

    seq = [[], []]
    allseq = []
    NE = len(elems)
    for st in range(-2, NE + 4):
        if 0 <= st + 2 < NE:
            allseq.append(('f', st + 2))
        if 0 <= st < NE:
            allseq.append(('e', st))
        if 0 <= st - 2 < NE:
            allseq.append(('a', st - 2))
        if 0 <= st - 3 < NE and (st - 3) % 2 == 1:
            allseq.append(('c', st - 3))
    items = []
    half0_last = 0
    for k, e in allseq:
        el = elems[e]
        ins = {'f': f_fma, 'e': f_exp, 'a': f_add, 'c': f_cvt}[k](el)
        items.append(ins)
        if k == 'c' and e == 15:
            half0_last = len(items)
    lo = qk_idx(n, 7, 1) + 2
    d0 = pv_idx(n, 0, 0, 0) - 1
    d1 = pv_idx(n, 1, 0, 0) - 2
    hi = min(lo + 31.5, d1)
    full = pre + items
    n0 = len(pre) + half0_last
    tot = sum(i.cost for i in full)
    c0 = sum(i.cost for i in full[:n0])
    mid = lo + (hi - lo) * c0 / tot
    if mid > d0 - 0.5:
        mid = d0 - 0.5
    spread(full[:n0], lo, mid)
    spread(full[n0:], mid, hi)
    sm_end[n] = hi

all_late = {}
for it in range(3):
    m = 12 * it + 11
    par = it % 2
    pre = []
    for qt in range(2):
        la = LACC + par * 4 + qt * 2
        tt = TMP + 12 + qt * 2 - 0
        tt = TMP + 6 * 2 + qt
        pre.append(valu('v_add_f32 v%d, v%d, v%d' % (la, la, la + 1), vr(la, 2), vr(la)))
    for qt in range(2):
        la = LACC + par * 4 + qt * 2
        pre.append(valu('v_mov_b32 v%d, v%d' % (la + 1, la), vr(la), vr(la + 1)))
    for qt in range(2):
        la = LACC + par * 4 + qt * 2
        pre.append(I('v_permlane32_swap_b32 v%d, v%d' % (la, la + 1), 'perm', r=vr(la, 2), w=vr(la, 2)))
    for qt in range(2):
        la = LACC + par * 4 + qt * 2
        pre.append(valu('v_add_f32 v%d, v%d, v%d' % (la, la, la + 1), vr(la, 2), vr(la)))
    for qt in range(2):
        la = LACC + par * 4 + qt * 2
        pre.append(trans('v_rcp_f32 v%d, v%d' % (RCP + qt, la), vr(la), vr(RCP + qt)))
    la0 = LACC + par * 4
    la1 = LACC + par * 4 + 2
    pre.append(valu('v_cmp_ngt_f32 vcc, s%d, v%d' % (S_THR, la0), vr(la0), []))
    pre.append(valu('v_cmp_ngt_f32 s[%d:%d], s%d, v%d' % (S_T2, S_T2 + 1, S_THR, la1), vr(la1), []))
    pre.append(salu('s_nop 3'))
    pre.append(salu('s_or_b64 vcc, vcc, s[%d:%d]' % (S_T2, S_T2 + 1)))
    pre.append(salu('s_cselect_b32 s%d, %d, 0' % (S_T2, 1 << it)))
    pre.append(salu('s_or_b32 s%d, s%d, s%d' % (S_FLAGS, S_FLAGS, S_T2)))
    p0 = sm_end[m] + 0.2
    spread(pre, p0, p0 + 3)
    e0 = p0 + 3.1
    e0 = max(e0, pv_idx(m, 1, 0, 0) + 3)
    last = (it == 2)
    if not last:
        dl = pv_idx(m + 1, 0, 3, 1) - 1
    else:
        dl = NM + 5
    blocks = []
    late_stores = []
    all_late[it] = late_stores
    for dt in range(4):
        for qt in range(2):
            o = O(qt, dt)
            blk = []
            for j in range(16):
                blk.append(valu('v_mul_f32 v%d, v%d, v%d' % (o + j, o + j, RCP + qt), vr(o + j) + vr(RCP + qt), vr(o + j)))
            for g2 in range(2):
                for j in range(4):
                    d = o + 8 * g2 + j
                    s = o + 8 * g2 + 2 * j
                    blk.append(valu('v_cvt_pk_bf16_f32 v%d, v%d, v%d' % (d, s, s + 1), vr(s, 2), vr(d)))
            for g2 in range(2):
                x = o + 8 * g2
                blk.append(I('v_permlane32_swap_b32 v%d, v%d' % (x, x + 2), 'perm', r=[('v', x), ('v', x + 2)], w=[('v', x), ('v', x + 2)]))
                blk.append(I('v_permlane32_swap_b32 v%d, v%d' % (x + 1, x + 3), 'perm', r=[('v', x + 1), ('v', x + 3)], w=[('v', x + 1), ('v', x + 3)]))
            for g2 in range(2 if not OPT['nostore'] else 0):
                x = o + 8 * g2
                if OPT['stash'] and not last:
                    sb = QB(par, qt, dt * 2 + g2)
                    for j in range(4):
                        blk.append(valu('v_accvgpr_write_b32 a%d, v%d' % (sb + j, x + j), vr(x + j), ar(sb + j)))
                    late_stores.append((qt, dt * 2 + g2, I('buffer_store_dwordx4 %s, v%d, s[%d:%d], s%d offen offset:%d' %
                                 (rng('a', sb, 4), VQO, SO, SO + 3, S_QOFF + it * 2 + qt, 64 * dt + 32 * g2), 'vstore',
                                 r=ar(sb, 4) + vr(VQO))))
                else:
                    blk.append(I('buffer_store_dwordx4 %s, v%d, s[%d:%d], s%d offen offset:%d' %
                                 (rng('v', x, 4), VQO, SO, SO + 3, S_QOFF + it * 2 + qt, 64 * dt + 32 * g2), 'vstore',
                                 r=vr(x, 4) + vr(VQO)))
            blocks.append((dt, qt, blk))
    span = dl - e0
    for j, (dt, qt, blk) in enumerate(blocks):
        lo = e0 + span * j / 8
        hi = e0 + span * (j + 1) / 8 - 0.01
        e_j = pv_idx(m, 1, dt, qt) + 3
        lo = max(lo, e_j)
        if not last:
            d_j = pv_idx(m + 1, 0, dt, qt) - 1
            assert hi <= d_j + 0.001, (hi, d_j)
        hi = max(hi, lo)
        spread(blk, lo, hi)

def spread_groups(insts, g, lo, hi):
    n = len(insts) // g
    for j in range(n):
        for x in insts[j * g:(j + 1) * g]:
            addfill(lo + (hi - lo) * j / n, x)


for t in range(NEARLY, 8):
    p = ph[t - NEARLY - 1]
    spread_groups(kv_dma(t), 3, p + 1, p + 9)
pvs = ph[4 - NEARLY - 1] + 10
spread_groups(vs_dma, 3, pvs, pvs + 14)
addfill(ph[3] + 0.5, sync('VS'))
spread(stage_reads, ph[3] + 1, ph[5] - 3)
addfill(ph[5] - 2, I('s_waitcnt lgkmcnt(0)', 'lgkm0'))
addfill(ph[5] - 2, salu('s_barrier'))
spread_groups(k8_dma, 3, ph[5] + 1, ph[5] + 20)

if OPT['stamp']:
    stamp_ph = [-1, 0, 1, 2, 4, 8, 12, 13, 14, 18, 24, 25, 30, 36]
    for i, n in enumerate(stamp_ph if not (OPT['pst'] or OPT['pst2']) else []):
        addfill(ph[n] - 0.9, salu('s_memtime s[%d:%d]' % (66 + 2 * i, 67 + 2 * i)))
    pro.insert(2, salu('s_memtime s[64:65]'))

items = [qload(1, qt, s) for qt in range(2) for s in range(8)]
spread_groups(items, 4, ph[6] + 1, ph[10])
if OPT['stash']:
    for it in range(2):
        ls = sorted(all_late[it], key=lambda x: (x[0], x[1]))
        lo = ph[12 * (it + 1) + 1] + 10
        hi = ph[12 * (it + 1) + 8]
        n = len(ls)
        for j, (qt, s8, st) in enumerate(ls):
            p = lo + (hi - lo) * j / n
            addfill(p, st)
            if it == 0 and j % 4 == 3:
                for jj in range(j - 3, j + 1):
                    addfill(p + 3, qload(2, ls[jj][0], ls[jj][1]))
else:
    items = [qload(2, qt, s) for qt in range(2) for s in range(8)]
    spread_groups(items, 4, ph[14] + 1, ph[18])

fill.sort(key=lambda x: (x[0], x[1]))
prog = list(pro)
fi = 0
while fi < len(fill) and fill[fi][0] < 0:
    prog.append(fill[fi][2])
    fi += 1
for g in range(NM):
    prog.append(mf[g])
    while fi < len(fill) and fill[fi][0] < g + 1 and (g < NM - 1):
        prog.append(fill[fi][2])
        fi += 1
while fi < len(fill):
    prog.append(fill[fi][2])
    fi += 1


def insert_waits(prog):
    out = []
    lq = []
    vq = []
    for ins in prog:
        touched = set(ins.r) | set(x for x in ins.w if x[0] != 'res') | set(ins.c)
        need_l = None
        for i, s in enumerate(lq):
            if s & touched:
                need_l = i
        need_v = None
        for i, s in enumerate(vq):
            if s & touched:
                need_v = i
        parts = []
        if need_v is not None:
            n = len(vq) - 1 - need_v
            n = min(n, 63)
            parts.append('vmcnt(%d)' % n)
            vq = vq[len(vq) - n:] if n > 0 else []
        if need_l is not None:
            n = len(lq) - 1 - need_l
            n = min(n, 15)
            parts.append('lgkmcnt(%d)' % n)
            lq = lq[len(lq) - n:] if n > 0 else []
        if parts:
            out.append(I('s_waitcnt ' + ' '.join(parts), 'wait'))
        out.append(ins)
        if ins.k == 'ds':
            lq.append(set(ins.w))
        elif ins.k == 'lgkm0':
            lq = []
        elif ins.k in ('vload', 'dma'):
            vq.append(set(ins.w))
        elif ins.k == 'vstore':
            vq.append(set())
    return out


def insert_nops(prog):
    out = []
    pos = 0
    lastw = {}
    lastc = {}
    laststore = {}
    for ins in prog:
        need = 0
        k = ins.k
        if k == 'mfma':
            dkey = ins.w[0]
            for r in ins.r:
                if r in lastw:
                    p, wk, _ = lastw[r]
                    ws = pos - p - 1
                    if wk in ('valu', 'trans', 'perm'):
                        need = max(need, 2 - ws)
                    elif wk == 'mfma':
                        need = max(need, 12 - ws)
            for r in ins.c:
                if r in lastw:
                    p, wk, dk = lastw[r]
                    ws = pos - p - 1
                    if wk in ('valu', 'trans', 'perm'):
                        need = max(need, 2 - ws)
                    elif wk == 'mfma' and dk != ins.c[0]:
                        need = max(need, 10 - ws)
        elif k in ('valu', 'trans', 'perm', 'ds', 'vload', 'vstore', 'dma'):
            for r in list(ins.r) + list(ins.w):
                if r in lastw:
                    p, wk, _ = lastw[r]
                    ws = pos - p - 1
                    if wk == 'mfma':
                        need = max(need, 12 - ws)
            if k in ('valu', 'perm'):
                for r in ins.r:
                    if r in lastw and lastw[r][1] == 'trans':
                        need = max(need, 1 - (pos - lastw[r][0] - 1))
            if k == 'perm':
                for r in ins.r:
                    if r in lastw and lastw[r][1] in ('valu', 'trans', 'perm'):
                        need = max(need, 2 - (pos - lastw[r][0] - 1))
            if k in ('valu', 'trans', 'perm'):
                for r in ins.w:
                    if r in lastc:
                        need = max(need, 7 - (pos - lastc[r] - 1))
                    if r in laststore:
                        need = max(need, 2 - (pos - laststore[r] - 1))
        if need > 0:
            out.append(I('s_nop %d' % (need - 1), 'salu'))
            pos += need
        out.append(ins)
        if k == 'salu' and ins.t.startswith('s_nop'):
            pos += int(ins.t.split()[1]) + 1
        else:
            pos += 1
        for r in ins.w:
            lastw[r] = (pos - 1, k, ins.w[0] if k == 'mfma' else None)
        if k == 'mfma':
            for r in ins.c:
                lastc[r] = pos - 1
        if k == 'vstore':
            for r in ins.r:
                laststore[r] = pos - 1
    return out


prog = insert_waits(prog)
prog = insert_nops(prog)

slow = []


def L(t):
    slow.append(t)


def slow_qk(b, koff_imm):
    for s in range(8):
        L('  ds_read_b128 %s, v%d offset:%d' % (rng('v', FR[s % 4], 4), TMP + s, koff_imm))
        L('  s_waitcnt lgkmcnt(0)')
        for qt in range(2):
            d = SB(b, qt)
            cs = '0' if s == 0 else rng('v', d, 16)
            L('  v_mfma_f32_32x32x16_bf16 %s, %s, %s, %s' % (rng('v', d, 16), rng('v', FR[s % 4], 4), rng('a', QB(0, qt, s), 4), cs))
    L('  s_nop 15')


def slow_softmax_pv(vsrc):
    for qt in range(2):
        s0 = SB(0, qt)
        for j in range(16):
            L('  v_fma_f32 v%d, v%d, s%d, v%d' % (s0 + j, s0 + j, S_C, NEGM + qt))
        for j in range(16):
            L('  v_exp_f32 v%d, v%d' % (s0 + j, s0 + j))
        L('  s_nop 1')
        for j in range(16):
            L('  v_add_f32 v%d, v%d, v%d' % (LACC + 2 * qt, LACC + 2 * qt, s0 + j))
        for hf in range(2):
            for j in range(4):
                L('  v_cvt_pk_bf16_f32 v%d, v%d, v%d' % (s0 + 8 * hf + j, s0 + 8 * hf + 2 * j, s0 + 8 * hf + 2 * j + 1))
    L('  s_nop 2')
    for ks in range(2):
        for dt in range(4):
            if vsrc is None:
                f = FR[dt]
                for r in range(2):
                    L('  ds_read_b64_tr_b16 %s, v%d offset:%d' % (rng('v', f + 2 * r, 2), VST + dt, ks * 4096 + r * 2048))
                L('  s_waitcnt lgkmcnt(0)')
                a = rng('v', f, 4)
            else:
                a = rng('a', VRES(vsrc * 2 + ks, dt), 4)
            for qt in range(2):
                d = O(qt, dt)
                L('  v_mfma_f32_32x32x16_bf16 %s, %s, %s, %s' % (rng('v', d, 16), a, rng('v', SB(0, qt) + 8 * ks, 4), rng('v', d, 16)))
    L('  s_nop 15')


S_IT = 12
S_CNT = 13
S_QO0 = 14
S_QO1 = 15
L('  s_waitcnt vmcnt(0) lgkmcnt(0)')
if OPT['stamp']:
    L('  s_memtime s[94:95]')
    if OPT['xcc']:
        L('  s_getreg_b32 s92, hwreg(HW_REG_XCC_ID)')
        L('  s_getreg_b32 s93, hwreg(HW_REG_HW_ID)')
    L('  s_load_dwordx2 s[96:97], s[0:1], 40')
    L('  s_waitcnt lgkmcnt(0)')
    L('  s_mov_b32 s98, 0x10000000')
    L('  s_mov_b32 s99, 0x00020000')
    L('  s_lshl_b32 s60, s2, 2')
    L('  s_add_u32 s60, s60, s3')
    L('  s_lshl_b32 s60, s60, 7')
    L('  v_mov_b32 v200, 0')
    L('  s_mov_b64 exec, 1')
    for i in range(16):
        L('  v_mov_b32 v202, s%d' % (64 + 2 * i))
        L('  v_mov_b32 v203, s%d' % (65 + 2 * i))
        L('  buffer_store_dwordx2 v[202:203], v200, s[96:99], s60 offen offset:%d' % (8 * i))
        L('  s_nop 3')
    L('  s_mov_b64 exec, -1')
    L('  s_waitcnt vmcnt(0)')
L('  s_cmp_eq_u32 s%d, 0' % S_FLAGS)
L('  s_cbranch_scc1 L_end')
L('  s_nop 15')
L('  s_nop 15')
L('  s_mov_b32 s%d, 0' % S_IT)
L('L_slow_it:')
L('  s_lshr_b32 s%d, s%d, s%d' % (S_T, S_FLAGS, S_IT))
L('  s_and_b32 s%d, s%d, 1' % (S_T, S_T))
L('  s_cmp_eq_u32 s%d, 0' % S_T)
L('  s_cbranch_scc1 L_slow_next')
L('  s_lshl_b32 s%d, s%d, 14' % (S_QO0, S_IT))
L('  s_add_u32 s%d, s%d, 8192' % (S_QO1, S_QO0))
for qt in range(2):
    for s in range(8):
        L('  buffer_load_dwordx4 %s, v%d, s[%d:%d], s%d offen offset:%d' %
          (rng('a', QB(0, qt, s), 4), VQO, SQ, SQ + 3, S_QO0 + qt, 32 * s))
for s in range(8):
    L('  v_and_b32 v%d, 0xffff, v%d' % (TMP + s, KA + s))
L('  v_mov_b32 v%d, 0xff800000' % (NEGM + 2))
L('  v_mov_b32 v%d, 0xff800000' % (NEGM + 3))
L('  s_waitcnt vmcnt(0)')
L('  s_mov_b32 s%d, 0' % S_CNT)
L('L_slow_p1:')
slow_qk(0, 0)
for qt in range(2):
    s0 = SB(0, qt)
    for j in range(16):
        L('  v_max_f32 v%d, v%d, v%d' % (NEGM + 2 + qt, NEGM + 2 + qt, s0 + j))
for s in range(8):
    L('  v_add_u32 v%d, 8192, v%d' % (TMP + s, TMP + s))
L('  s_add_u32 s%d, s%d, 1' % (S_CNT, S_CNT))
L('  s_cmp_lt_u32 s%d, 12' % S_CNT)
L('  s_cbranch_scc1 L_slow_p1')
for qt in range(2):
    x = NEGM + 2 + qt
    L('  v_mov_b32 v%d, v%d' % (RCP, x))
    L('  s_nop 2')
    L('  v_permlane32_swap_b32 v%d, v%d' % (x, RCP))
    L('  s_nop 1')
    L('  v_max_f32 v%d, v%d, v%d' % (x, x, RCP))
    L('  v_mul_f32 v%d, s%d, v%d' % (NEGM + qt, S_NC, x))
    L('  v_mov_b32 v%d, 0' % (LACC + 2 * qt))
for j in range(128):
    L('  v_mov_b32 v%d, 0' % j)
for s in range(8):
    L('  v_and_b32 v%d, 0xffff, v%d' % (TMP + s, KA + s))
for dt in range(4):
    L('  v_mov_b32 v%d, v%d' % (VST + dt, VA + dt))
L('  s_mov_b32 s%d, 0' % S_CNT)
L('L_slow_p2:')
slow_qk(0, 0)
slow_softmax_pv(None)
for s in range(8):
    L('  v_add_u32 v%d, 8192, v%d' % (TMP + s, TMP + s))
for dt in range(4):
    L('  v_add_u32 v%d, 8192, v%d' % (VST + dt, VST + dt))
L('  s_add_u32 s%d, s%d, 1' % (S_CNT, S_CNT))
L('  s_cmp_lt_u32 s%d, 8' % S_CNT)
L('  s_cbranch_scc1 L_slow_p2')
for t in range(4):
    slow_qk(0, t * 8192)
    slow_softmax_pv(t)
for qt in range(2):
    la = LACC + 2 * qt
    L('  v_mov_b32 v%d, v%d' % (la + 1, la))
    L('  s_nop 2')
    L('  v_permlane32_swap_b32 v%d, v%d' % (la, la + 1))
    L('  s_nop 1')
    L('  v_add_f32 v%d, v%d, v%d' % (la, la, la + 1))
    L('  v_rcp_f32 v%d, v%d' % (RCP + qt, la))
L('  s_nop 1')
for dt in range(4):
    for qt in range(2):
        o = O(qt, dt)
        for j in range(16):
            L('  v_mul_f32 v%d, v%d, v%d' % (o + j, o + j, RCP + qt))
        for g2 in range(2):
            for j in range(4):
                L('  v_cvt_pk_bf16_f32 v%d, v%d, v%d' % (o + 8 * g2 + j, o + 8 * g2 + 2 * j, o + 8 * g2 + 2 * j + 1))
        L('  s_nop 2')
        for g2 in range(2):
            x = o + 8 * g2
            L('  v_permlane32_swap_b32 v%d, v%d' % (x, x + 2))
            L('  v_permlane32_swap_b32 v%d, v%d' % (x + 1, x + 3))
        L('  s_nop 1')
        for g2 in range(2):
            x = o + 8 * g2
            L('  buffer_store_dwordx4 %s, v%d, s[%d:%d], s%d offen offset:%d' %
              (rng('v', x, 4), VQO, SO, SO + 3, S_QO0 + qt, 64 * dt + 32 * g2))
L('  s_waitcnt vmcnt(0)')
L('L_slow_next:')
L('  s_add_u32 s%d, s%d, 1' % (S_IT, S_IT))
L('  s_cmp_lt_u32 s%d, 3' % S_IT)
L('  s_cbranch_scc1 L_slow_it')

hdr = open('standalone__gqa_softmax__near_ridge.s.ref').read().split('\n')
out = []
for ln in hdr:
    if ln.startswith('; @launch'):
        out.append('; @launch grid=(256,1,1) block=(256,1,1) lds=163840')
        break
    out.append(ln)
out.append('; Generated by a hand-written schedule generator. Design: 1 WG/CU (4 waves x 512 regs), K + 2/3 V resident in LDS,')
out.append('; last 1/3 of V resident in AGPRs, each wave: 3 x 64 query rows, S^T = K Q^T, O^T = V^T P^T.')
out.append('.amdgcn_target "amdgcn-amd-amdhsa--gfx950"')
out.append('.text')
out.append('.globl %s' % NAME)
out.append('.p2align 8')
out.append('.type %s,@function' % NAME)
out.append('%s:' % NAME)
for ins in prog:
    out.append('  ' + ins.t)
out.extend(slow)
out.append('L_end:')
out.append('  s_endpgm')
out.append('.section .rodata,"a"')
out.append('.p2align 6')
out.append('.amdhsa_kernel %s' % NAME)
out.append('  .amdhsa_next_free_vgpr 512')
out.append('  .amdhsa_next_free_sgpr 102')
out.append('  .amdhsa_accum_offset 256')
out.append('  .amdhsa_group_segment_fixed_size 0')
out.append('  .amdhsa_kernarg_size 48')
out.append('  .amdhsa_user_sgpr_count 2')
out.append('  .amdhsa_user_sgpr_kernarg_segment_ptr 1')
out.append('  .amdhsa_system_sgpr_workgroup_id_x 1')
out.append('.end_amdhsa_kernel')
open(sys.argv[1], 'w').write('\n'.join(out) + '\n')
nn = sum(1 for i in prog if i.t.startswith('s_nop'))
nw = sum(1 for i in prog if i.t.startswith('s_waitcnt'))
print('instructions', len(prog), 'mfma', NM, 'nops', nn, 'waits', nw)
```

```python
import sys, math, struct

OPT = dict(pf=1, pfnt=0, dmant=0, stamp=0, nearly=2, qnt=1, kvnt=0, rot=1, lead=7, q0dma=0)
for a in sys.argv[2:]:
    k, v = a.split('=')
    OPT[k] = int(v)

NAME = 'standalone__gqa_softmax__near_ridge_kernel'


class I:
    __slots__ = ('t', 'k', 'r', 'w', 'c', 'cost')

    def __init__(self, t, k, r=(), w=(), c=(), cost=4):
        self.t = t
        self.k = k
        self.r = list(r)
        self.w = list(w)
        self.c = list(c)
        self.cost = cost


def vr(a, n=1):
    return [('v', a + i) for i in range(n)]


def ar(a, n=1):
    return [('a', a + i) for i in range(n)]


def rng(p, a, n):
    return '%s[%d:%d]' % (p, a, a + n - 1)


def O(qt, dt):
    return (qt * 4 + dt) * 16


def SB(b, qt):
    return 128 + (b * 2 + qt) * 16


FR = [192, 196, 200, 204]
KA = 208
VA = 216
VQO = 220
NEGM = 221
LACC = 225
TMP = 233
SA = 245
VG = 249
VL = 250
RCP = 251
VDK = 253
VDV = 254
VPF = 255
VST = TMP + 8


def VRES(ks, dt):
    return (ks * 4 + dt) * 4


def QB(par, qt, s):
    return 128 + par * 64 + (qt * 8 + s) * 4


SQ, SK, SV, SO = 20, 24, 28, 32
S_STG = 36
S_T2 = 38
S_W1K = 40
S_T = 41
S_C = 42
S_NC = 43
S_THR = 44
S_FLAGS = 45
S_QOFF = 46
S_TOFF = 52

KSLOT = {t: t for t in range(12)}
RING = ()
VBASE = 98304
STGBASE = 0
VSTAGE = 65536

C_SCALE = math.log2(math.e) / math.sqrt(128.0)


def f32hex(x):
    return '0x%08x' % struct.unpack('<I', struct.pack('<f', x))[0]


def mfma(d, a, b, c):
    ap, ab = a
    bp, bb = b
    cs = '0' if c is None else rng('v', c, 16)
    t = 'v_mfma_f32_32x32x16_bf16 %s, %s, %s, %s' % (rng('v', d, 16), rng(ap, ab, 4), rng(bp, bb, 4), cs)
    rr = [(ap, ab + i) for i in range(4)] + [(bp, bb + i) for i in range(4)]
    return I(t, 'mfma', r=rr, w=vr(d, 16), c=(vr(c, 16) if c is not None else []), cost=8)


def valu(t, r, w):
    return I(t, 'valu', r=r, w=w)


def trans(t, r, w):
    return I(t, 'trans', r=r, w=w, cost=8)


def salu(t):
    return I(t, 'salu')


def perm(a, b):
    return I('v_permlane32_swap_b32 v%d, v%d' % (a, b), 'perm', r=[('v', a), ('v', b)], w=[('v', a), ('v', b)], cost=8)


pro = []
fill = []


def addfill(pos, inst):
    fill.append((pos, len(fill), inst))


def P(i):
    pro.append(i)


P(salu('s_cmp_ge_u32 s2, 256'))
P(salu('s_cbranch_scc1 L_end'))
if OPT['stamp']:
    P(salu('s_memtime s[64:65]'))
P(salu('s_load_dwordx4 s[4:7], s[0:1], 0'))
P(salu('s_load_dwordx4 s[8:11], s[0:1], 16'))
P(valu('v_lshrrev_b32 v1, 6, v0', vr(0), vr(1)))
P(valu('v_and_b32 v0, 63, v0', vr(0), vr(0)))
P(salu('s_nop 1'))
P(valu('v_readfirstlane_b32 s3, v1', vr(1), []))
P(salu('s_and_b32 s12, s2, 7'))
P(salu('s_lshr_b32 s13, s2, 5'))
P(salu('s_lshl_b32 s13, s13, 3'))
P(salu('s_add_u32 s12, s12, s13'))
P(salu('s_lshr_b32 s13, s2, 3'))
P(salu('s_and_b32 s13, s13, 3'))
P(salu('s_mul_i32 s14, s12, 98304'))
P(salu('s_mul_i32 s15, s12, 3072'))
P(salu('s_mul_i32 s16, s13, 768'))
P(salu('s_add_u32 s15, s15, s16'))
P(salu('s_mul_i32 s16, s3, 192'))
P(salu('s_add_u32 s15, s15, s16'))
P(salu('s_lshl_b32 s15, s15, 8'))
P(salu('s_lshl_b32 s%d, s3, 10' % S_W1K))
P(valu('v_lshrrev_b32 v1, 5, v0', vr(0), vr(1)))
P(valu('v_and_b32 v2, 31, v0', vr(0), vr(2)))
P(valu('v_lshlrev_b32 v6, 8, v2', vr(2), vr(6)))
P(valu('v_lshlrev_b32 v7, 4, v1', vr(1), vr(7)))
P(valu('v_add_u32 v%d, v6, v7' % VQO, vr(6) + vr(7), vr(VQO)))
for it in range(3):
    for qt in range(2):
        P(salu('s_mov_b32 s%d, %d' % (S_QOFF + it * 2 + qt, (it * 64 + qt * 32) * 256)))
P(salu('s_waitcnt lgkmcnt(0)'))
P(salu('s_add_u32 s%d, s4, s15' % SQ))
P(salu('s_addc_u32 s%d, s5, 0' % (SQ + 1)))
P(salu('s_mov_b32 s%d, %d' % (SQ + 2, 192 * 256)))
P(salu('s_mov_b32 s%d, 0x00020000' % (SQ + 3)))


def qload_direct(it, qt, s):
    d = QB(it % 2, qt, s)
    return I('buffer_load_dwordx4 %s, v%d, s[%d:%d], s%d offen offset:%d' %
             (rng('a', d, 4), VQO, SQ, SQ + 3, S_QOFF + it * 2 + qt, 32 * s) + (' nt' if OPT['qnt'] else ''), 'vload',
             r=vr(VQO), w=ar(d, 4))


for qt in range(2):
    for s in range(8):
        P(qload_direct(0, qt, s))

P(salu('s_add_u32 s%d, s6, s14' % SK))
P(salu('s_addc_u32 s%d, s7, 0' % (SK + 1)))
P(salu('s_mov_b32 s%d, 98304' % (SK + 2)))
P(salu('s_mov_b32 s%d, 0x00020000' % (SK + 3)))
P(salu('s_add_u32 s%d, s8, s14' % SV))
P(salu('s_addc_u32 s%d, s9, 0' % (SV + 1)))
P(salu('s_mov_b32 s%d, 98304' % (SV + 2)))
P(salu('s_mov_b32 s%d, 0x00020000' % (SV + 3)))
P(salu('s_add_u32 s%d, s10, s15' % SO))
P(salu('s_addc_u32 s%d, s11, 0' % (SO + 1)))
P(salu('s_mov_b32 s%d, %d' % (SO + 2, 192 * 256)))
P(salu('s_mov_b32 s%d, 0x00020000' % (SO + 3)))
P(salu('s_mul_i32 s16, s13, %d' % (3 if OPT['rot'] else 0)))
for t in range(12):
    P(salu('s_add_u32 s17, s16, %d' % t))
    P(salu('s_sub_u32 s18, s17, 12'))
    P(salu('s_cmp_ge_u32 s17, 12'))
    P(salu('s_cselect_b32 s17, s18, s17'))
    P(salu('s_lshl_b32 s17, s17, 13'))
    P(salu('s_add_u32 s%d, s17, s%d' % (S_TOFF + t, S_W1K)))
P(valu('v_and_b32 v3, 15, v0', vr(0), vr(3)))
P(valu('v_lshrrev_b32 v5, 4, v0', vr(0), vr(5)))
P(valu('v_and_b32 v4, 1, v5', vr(5), vr(4)))
P(valu('v_lshlrev_b32 v6, 2, v5', vr(5), vr(6)))
P(valu('v_xor_b32 v7, v3, v6', vr(3) + vr(6), vr(7)))
P(valu('v_lshlrev_b32 v7, 4, v7', vr(7), vr(7)))
P(valu('v_lshlrev_b32 v8, 8, v5', vr(5), vr(8)))
P(valu('v_add_u32 v%d, v7, v8' % VDV, vr(7) + vr(8), vr(VDV)))
P(salu('s_lshl_b32 s%d, s3, 2' % S_T))
P(valu('v_add_u32 v6, s%d, v5' % S_T, vr(5), vr(6)))
P(valu('v_xor_b32 v7, v3, v6', vr(3) + vr(6), vr(7)))
P(valu('v_lshlrev_b32 v7, 4, v7', vr(7), vr(7)))
P(valu('v_add_u32 v%d, v7, v8' % VDK, vr(7) + vr(8), vr(VDK)))


def dma(srd, voff, t, hf, ldsofs, res):
    return [salu('s_add_u32 m0, s%d, %d' % (S_W1K, ldsofs)),
            salu('s_add_u32 s%d, s%d, %d' % (S_T, S_TOFF + t, 4096 * hf)),
            I('buffer_load_dwordx4 v%d, s[%d:%d], s%d offen%s lds' % (voff, srd, srd + 3, S_T, ' nt' if OPT['kvnt'] else ''),
              'dma', r=vr(voff), w=[('res', res)])]


def k_dma(it, t):
    r = []
    for hf in range(2):
        r += dma(SK, VDK, t, hf, 8192 * KSLOT[t] + 4096 * hf, 'K%d_%d' % (it, t))
    return r


def v_dma(t):
    r = []
    for hf in range(2):
        r += dma(SV, VDV, t, hf, VBASE + 8192 * t + 4096 * hf, 'V%d' % t)
    return r


NEARLY = OPT['nearly']
for t in range(NEARLY):
    for x in k_dma(0, t) + v_dma(t):
        P(x)

P(salu('s_mov_b32 s%d, %s' % (S_C, f32hex(C_SCALE))))
P(salu('s_mov_b32 s%d, %s' % (S_NC, f32hex(-C_SCALE))))
P(salu('s_mov_b32 s%d, %s' % (S_THR, f32hex(65536.0))))
P(salu('s_mov_b32 s%d, 0' % S_FLAGS))
P(salu('s_lshl_b32 s%d, s3, 12' % S_STG))
P(salu('s_add_u32 s%d, s%d, %d' % (S_STG, S_STG, STGBASE)))
P(valu('v_lshlrev_b32 v6, 8, v2', vr(2), vr(6)))
P(valu('v_xor_b32 v7, v1, v3', vr(1) + vr(3), vr(7)))
P(valu('v_lshlrev_b32 v7, 4, v7', vr(7), vr(7)))
P(valu('v_add_u32 v%d, v6, v7' % KA, vr(6) + vr(7), vr(KA)))
for s in range(1, 8):
    P(valu('v_xor_b32 v%d, %d, v%d' % (KA + s, 32 * s, KA), vr(KA), vr(KA + s)))
P(valu('v_lshrrev_b32 v6, 2, v3', vr(3), vr(6)))
P(valu('v_lshlrev_b32 v7, 2, v1', vr(1), vr(7)))
P(valu('v_add_u32 v7, v7, v6', vr(7) + vr(6), vr(7)))
P(valu('v_lshlrev_b32 v7, 8, v7', vr(7), vr(7)))
P(valu('v_lshlrev_b32 v8, 6, v6', vr(6), vr(8)))
P(valu('v_add_u32 v7, v7, v8', vr(7) + vr(8), vr(7)))
P(valu('v_lshlrev_b32 v8, 5, v4', vr(4), vr(8)))
P(valu('v_add_u32 v7, v7, v8', vr(7) + vr(8), vr(7)))
P(valu('v_and_b32 v8, 3, v3', vr(3), vr(8)))
P(valu('v_lshlrev_b32 v8, 3, v8', vr(8), vr(8)))
P(valu('v_add_u32 v7, v7, v8', vr(7) + vr(8), vr(7)))
for dt in range(4):
    P(valu('v_xor_b32 v8, %d, v7' % (dt << 6), vr(7), vr(8)))
    P(valu('v_add_u32 v%d, %d, v8' % (VA + dt, VBASE), vr(8), vr(VA + dt)))
P(valu('v_and_b32 v6, 7, v2', vr(2), vr(6)))
P(valu('v_xor_b32 v6, v6, v1', vr(6) + vr(1), vr(6)))
P(valu('v_lshlrev_b32 v6, 4, v6', vr(6), vr(6)))
P(valu('v_lshlrev_b32 v7, 7, v2', vr(2), vr(7)))
P(valu('v_add_u32 v6, v6, v7', vr(6) + vr(7), vr(6)))
for j in range(4):
    P(valu('v_xor_b32 v7, %d, v6' % (32 * j), vr(6), vr(7)))
    P(valu('v_add_u32 v%d, s%d, v7' % (SA + j, S_STG), vr(7), vr(SA + j)))
P(valu('v_lshrrev_b32 v6, 3, v0', vr(0), vr(6)))
P(valu('v_and_b32 v7, 7, v0', vr(0), vr(7)))
P(valu('v_xor_b32 v7, v7, v6', vr(7) + vr(6), vr(7)))
P(valu('v_lshlrev_b32 v7, 4, v7', vr(7), vr(7)))
P(valu('v_lshlrev_b32 v6, 8, v6', vr(6), vr(6)))
P(valu('v_add_u32 v%d, v6, v7' % VG, vr(6) + vr(7), vr(VG)))
P(valu('v_lshlrev_b32 v6, 4, v0', vr(0), vr(6)))
P(valu('v_add_u32 v%d, s%d, v6' % (VL, S_STG), vr(6), vr(VL)))
P(valu('v_lshlrev_b32 v%d, 7, v0' % VPF, vr(0), vr(VPF)))


def sync(res):
    return I('s_barrier', 'sync', r=[('res', res)])


NT = 36
ph = {}
pv_base = {}
qk_base = {}
idx = 0
for n in range(-1, NT + 1):
    ph[n] = idx
    if n >= 1:
        pv_base[n - 1] = idx
        idx += 16
    if n + 1 <= NT - 1:
        qk_base[n + 1] = idx
        idx += 16
NM = idx


def pv_idx(m, ks, dt, qt):
    return pv_base[m] + ks * 8 + dt * 2 + qt


def qk_idx(m, s, qt):
    return qk_base[m] + s * 2 + qt


def spread(items, lo, hi):
    tot = sum(i.cost for i in items)
    acc = 0
    for i in items:
        addfill(lo + (hi - lo) * acc / tot, i)
        acc += i.cost


flex = []


def spread_flex(items, lo, hi):
    flex.append((items, lo, hi))


BUDGET = OPT.get('budget', 24)


def place_flex(extra):
    used = {}
    for (p, _, ins) in fill:
        g = int(math.floor(p))
        used[g] = used.get(g, 0) + ins.cost
    for g, c in extra.items():
        used[g] = used.get(g, 0) + c
    for (items, lo, hi) in flex:
        glo = int(math.floor(lo))
        ghi = max(int(math.floor(hi)), glo)
        gaps = list(range(glo, ghi + 1))
        C = sum(i.cost for i in items)
        lvl = BUDGET
        while sum(max(0, lvl - used.get(g, 0)) for g in gaps) < C:
            lvl += 2
        av = [max(0, lvl - used.get(g, 0)) for g in gaps]
        A = float(sum(av))
        k = 0
        placed = 0.0
        cum = 0.0
        for gi, g in enumerate(gaps):
            cum += av[gi]
            tgt = C * cum / A
            n_here = 0
            while k < len(items) and (placed + items[k].cost * 0.5 <= tgt or gi == len(gaps) - 1):
                p = max(g + 0.5 + 0.001 * n_here, lo)
                addfill(p, items[k])
                used[g] = used.get(g, 0) + items[k].cost
                placed += items[k].cost
                k += 1
                n_here += 1


def spread_groups(insts, g, lo, hi):
    n = len(insts) // g
    for j in range(n):
        for x in insts[j * g:(j + 1) * g]:
            addfill(lo + (hi - lo) * j / n, x)


mf = [None] * NM
fragctr = [0]
LEAD = OPT['lead']


def newfrag():
    f = FR[fragctr[0] % 4]
    fragctr[0] += 1
    return f


order = []
for n in range(-1, NT + 1):
    if n >= 1:
        order.append(('pv', n - 1))
    if n + 1 <= NT - 1:
        order.append(('qk', n + 1))

khi = False
for kind, m in order:
    it, t = divmod(m, 12)
    b = m % 2
    if kind == 'qk':
        slot = KSLOT[t]
        want_hi = slot >= 8
        for s in range(8):
            f = newfrag()
            u = qk_idx(m, s, 0)
            pos = u - LEAD
            if s == 0 and (it == 0 or t in RING):
                addfill(pos - 0.3, sync('K%d_%d' % (it, t)))
                if t in RING and not (it == 0 and t == 0):
                    nt_ = (t + 3) % 12
                    nit = it + (1 if t == 9 else 0)
                    if t == 0:
                        nt_, nit = 3, it
                    elif t == 3:
                        nt_, nit = 6, it
                    elif t == 6:
                        nt_, nit = 9, it
                    else:
                        nt_, nit = 0, it + 1
                    if nit <= 2:
                        spread_groups(k_dma(nit, nt_), 3, pos + 1.5, pos + 6.5)
            if want_hi != khi:
                addfill(pos - 0.1, valu('v_xor_b32 v%d, 0x10000, v%d' % (KA + s, KA + s), vr(KA + s), vr(KA + s)))
            off = (slot % 8) * 8192
            addfill(pos, I('ds_read_b128 %s, v%d offset:%d' % (rng('v', f, 4), KA + s, off), 'ds', r=vr(KA + s), w=vr(f, 4)))
            for qt in range(2):
                d = SB(b, qt)
                mf[qk_idx(m, s, qt)] = mfma(d, ('v', f), ('a', QB(it % 2, qt, s)), None if s == 0 else d)
        khi = want_hi
    else:
        for ks in range(2):
            for dt in range(4):
                u = pv_idx(m, ks, dt, 0)
                if t < 8:
                    f = newfrag()
                    for r in range(2):
                        off = t * 8192 + ks * 4096 + r * 2048
                        addfill(u - LEAD, I('ds_read_b64_tr_b16 %s, v%d offset:%d' % (rng('v', f + 2 * r, 2), VA + dt, off),
                                            'ds', r=vr(VA + dt), w=vr(f + 2 * r, 2)))
                    a = ('v', f)
                else:
                    a = ('a', VRES((t - 8) * 2 + ks, dt))
                for qt in range(2):
                    d = O(qt, dt)
                    first = (t == 0 and ks == 0)
                    mf[pv_idx(m, ks, dt, qt)] = mfma(d, a, ('v', SB(b, qt) + 8 * ks), None if first else d)

sm_end = {}
for n in range(NT):
    it, t = divmod(n, 12)
    par = it % 2
    b = n % 2
    pre = []
    if t == 0:
        for qt in range(2):
            s0 = SB(b, qt)
            tt = TMP + qt * 4
            pre.append(valu('v_max3_f32 v%d, v%d, v%d, v%d' % (tt, s0, s0 + 1, s0 + 2), vr(s0, 3), vr(tt)))
            pre.append(valu('v_max3_f32 v%d, v%d, v%d, v%d' % (tt + 1, s0 + 3, s0 + 4, s0 + 5), vr(s0 + 3, 3), vr(tt + 1)))
            pre.append(valu('v_max3_f32 v%d, v%d, v%d, v%d' % (tt + 2, s0 + 6, s0 + 7, s0 + 8), vr(s0 + 6, 3), vr(tt + 2)))
            pre.append(valu('v_max3_f32 v%d, v%d, v%d, v%d' % (tt + 3, s0 + 9, s0 + 10, s0 + 11), vr(s0 + 9, 3), vr(tt + 3)))
        for qt in range(2):
            s0 = SB(b, qt)
            tt = TMP + qt * 4
            pre.append(valu('v_max3_f32 v%d, v%d, v%d, v%d' % (tt, tt, s0 + 12, s0 + 13), vr(tt) + vr(s0 + 12, 2), vr(tt)))
            pre.append(valu('v_max3_f32 v%d, v%d, v%d, v%d' % (tt + 1, tt + 1, s0 + 14, s0 + 15), vr(tt + 1) + vr(s0 + 14, 2), vr(tt + 1)))
        for qt in range(2):
            tt = TMP + qt * 4
            pre.append(valu('v_max3_f32 v%d, v%d, v%d, v%d' % (tt + 2, tt + 2, tt + 3, tt), vr(tt + 2, 2) + vr(tt), vr(tt + 2)))
        for qt in range(2):
            tt = TMP + qt * 4
            pre.append(valu('v_max_f32 v%d, v%d, v%d' % (tt, tt + 1, tt + 2), vr(tt + 1, 2), vr(tt)))
        for qt in range(2):
            tt = TMP + qt * 4
            pre.append(valu('v_mov_b32 v%d, v%d' % (tt + 1, tt), vr(tt), vr(tt + 1)))
        for qt in range(2):
            tt = TMP + qt * 4
            pre.append(perm(tt, tt + 1))
        for qt in range(2):
            tt = TMP + qt * 4
            pre.append(valu('v_max_f32 v%d, v%d, v%d' % (tt, tt, tt + 1), vr(tt, 2), vr(tt)))
        for qt in range(2):
            tt = TMP + qt * 4
            nm = NEGM + par * 2 + qt
            pre.append(valu('v_mul_f32 v%d, s%d, v%d' % (nm, S_NC, tt), vr(tt), vr(nm)))
    elems = [(hf, qt, j) for hf in range(2) for qt in range(2) for j in range(8)]

    def reg(e):
        hf, qt, j = e
        return SB(b, qt) + 8 * hf + j

    def f_fma(e):
        hf, qt, j = e
        r = reg(e)
        nm = NEGM + par * 2 + qt
        return valu('v_fma_f32 v%d, v%d, s%d, v%d' % (r, r, S_C, nm), vr(r) + vr(nm), vr(r))

    def f_exp(e):
        r = reg(e)
        return trans('v_exp_f32 v%d, v%d' % (r, r), vr(r), vr(r))

    def f_add(e):
        hf, qt, j = e
        r = reg(e)
        la = LACC + par * 4 + qt * 2 + (j & 1)
        if t == 0 and hf == 0 and j < 2:
            return valu('v_add_f32 v%d, 0, v%d' % (la, r), vr(r), vr(la))
        return valu('v_add_f32 v%d, v%d, v%d' % (la, la, r), vr(la) + vr(r), vr(la))

    def f_cvt(e):
        hf, qt, j = e
        r = reg(e)
        d = SB(b, qt) + 8 * hf + j // 2
        return valu('v_cvt_pk_bf16_f32 v%d, v%d, v%d' % (d, r - 1, r), vr(r - 1, 2), vr(d))

    allseq = []
    NE = len(elems)
    for st in range(-2, NE + 4):
        if 0 <= st + 2 < NE:
            allseq.append(('f', st + 2))
        if 0 <= st < NE:
            allseq.append(('e', st))
        if 0 <= st - 2 < NE:
            allseq.append(('a', st - 2))
        if 0 <= st - 3 < NE and (st - 3) % 2 == 1:
            allseq.append(('c', st - 3))
    items = []
    half0_last = 0
    for k, e in allseq:
        el = elems[e]
        items.append({'f': f_fma, 'e': f_exp, 'a': f_add, 'c': f_cvt}[k](el))
        if k == 'c' and e == 15:
            half0_last = len(items)
    lo = qk_idx(n, 7, 1) + 2
    d0 = pv_idx(n, 0, 0, 0) - 1
    d1 = pv_idx(n, 1, 0, 0) - 2
    hi = min(lo + 31.5, d1)
    full = pre + items
    n0 = len(pre) + half0_last
    tot = sum(i.cost for i in full)
    c0 = sum(i.cost for i in full[:n0])
    mid = lo + (hi - lo) * c0 / tot
    if mid > d0 - 0.5:
        mid = d0 - 0.5
    spread_flex(full[:n0], lo, mid)
    spread_flex(full[n0:], math.floor(mid) + 1, hi)
    sm_end[n] = hi

stg_seq = [0]


def q_chunk(it, qt, dp):
    stg_seq[0] += 1
    tag = 'stg%d' % stg_seq[0]
    d = []
    for i in range(4):
        d.append(salu('s_add_u32 m0, s%d, %d' % (S_STG, 1024 * i)))
        d.append(salu('s_add_u32 s%d, s%d, %d' % (S_T, S_QOFF + it * 2 + qt, 2048 * i + 128 * dp)))
        d.append(I('buffer_load_dwordx4 v%d, s[%d:%d], s%d offen%s lds' % (VG, SQ, SQ + 3, S_T, ' nt' if OPT['dmant'] else ''),
                   'dma', r=vr(VG) + [('res', 'stgR')], w=[('res', tag)]))
    rd = []
    for j in range(4):
        dst = QB(it % 2, qt, dp * 4 + j)
        rd.append(I('ds_read_b128 %s, v%d' % (rng('a', dst, 4), SA + j), 'ds', r=vr(SA + j) + [('res', tag)],
                    w=ar(dst, 4) + [('res', 'stgR')]))
    return d, rd


late_stores = {}
for it in range(3):
    m = 12 * it + 11
    par = it % 2
    last = (it == 2)
    pre = []
    for qt in range(2):
        la = LACC + par * 4 + qt * 2
        pre.append(valu('v_add_f32 v%d, v%d, v%d' % (la, la, la + 1), vr(la, 2), vr(la)))
    for qt in range(2):
        la = LACC + par * 4 + qt * 2
        pre.append(valu('v_mov_b32 v%d, v%d' % (la + 1, la), vr(la), vr(la + 1)))
    for qt in range(2):
        la = LACC + par * 4 + qt * 2
        pre.append(perm(la, la + 1))
    for qt in range(2):
        la = LACC + par * 4 + qt * 2
        pre.append(valu('v_add_f32 v%d, v%d, v%d' % (la, la, la + 1), vr(la, 2), vr(la)))
    for qt in range(2):
        la = LACC + par * 4 + qt * 2
        pre.append(trans('v_rcp_f32 v%d, v%d' % (RCP + qt, la), vr(la), vr(RCP + qt)))
    la0 = LACC + par * 4
    la1 = LACC + par * 4 + 2
    pre.append(valu('v_cmp_ngt_f32 vcc, s%d, v%d' % (S_THR, la0), vr(la0), []))
    pre.append(valu('v_cmp_ngt_f32 s[%d:%d], s%d, v%d' % (S_T2, S_T2 + 1, S_THR, la1), vr(la1), []))
    pre.append(salu('s_nop 3'))
    grp = [salu('s_or_b64 vcc, vcc, s[%d:%d]' % (S_T2, S_T2 + 1)),
           salu('s_cselect_b32 s%d, %d, 0' % (S_T2, 1 << it)),
           salu('s_or_b32 s%d, s%d, s%d' % (S_FLAGS, S_FLAGS, S_T2))]
    p0 = math.floor(sm_end[m]) + 1.0
    spread(pre, p0, p0 + 3)
    for x in grp:
        addfill(p0 + 3.05, x)
    e0 = max(p0 + 3.1, pv_idx(m, 1, 0, 0) + 3)
    dl = (pv_idx(m + 1, 0, 3, 1) - 1) if not last else NM + 5
    chunks = []
    stores = []
    for dt in range(4):
        for qt in range(2):
            blk = []
            o = O(qt, dt)
            for j in range(16):
                blk.append(valu('v_mul_f32 v%d, v%d, v%d' % (o + j, o + j, RCP + qt), vr(o + j) + vr(RCP + qt), vr(o + j)))
            for g2 in range(2):
                for j in range(4):
                    d = o + 8 * g2 + j
                    s = o + 8 * g2 + 2 * j
                    blk.append(valu('v_cvt_pk_bf16_f32 v%d, v%d, v%d' % (d, s, s + 1), vr(s, 2), vr(d)))
            for g2 in range(2):
                x = o + 8 * g2
                blk.append(perm(x, x + 2))
                blk.append(perm(x + 1, x + 3))
            for g2 in range(2):
                x = o + 8 * g2
                if not last:
                    sb = QB(par, qt, dt * 2 + g2)
                    for j in range(4):
                        blk.append(valu('v_accvgpr_write_b32 a%d, v%d' % (sb + j, x + j), vr(x + j), ar(sb + j)))
                    stores.append((qt, dt * 2 + g2, I('buffer_store_dwordx4 %s, v%d, s[%d:%d], s%d offen offset:%d' %
                                  (rng('a', sb, 4), VQO, SO, SO + 3, S_QOFF + it * 2 + qt, 64 * dt + 32 * g2), 'vstore',
                                  r=ar(sb, 4) + vr(VQO))))
                else:
                    blk.append(I('buffer_store_dwordx4 %s, v%d, s[%d:%d], s%d offen offset:%d' %
                                 (rng('v', x, 4), VQO, SO, SO + 3, S_QOFF + it * 2 + qt, 64 * dt + 32 * g2), 'vstore',
                                 r=vr(x, 4) + vr(VQO)))
            chunks.append((dt, qt, blk))
    span = dl - e0
    prev_hi = -1
    for j, (dt, qt, blk) in enumerate(chunks):
        lo = e0 + span * j / 8
        hi = e0 + span * (j + 1) / 8 - 0.01
        e_j = pv_idx(m, 1, dt, qt) + 3
        lo = max(lo, e_j, math.floor(prev_hi) + 1)
        if not last:
            d_j = pv_idx(m + 1, 0, dt, qt) - 1
            hi = min(hi, d_j)
        hi = max(hi, lo)
        prev_hi = hi
        spread_flex(blk, lo, hi)
    late_stores[it] = stores

LATEK = (8, 9, 10, 11)
for t in range(NEARLY, 8):
    p = ph[t - NEARLY - 1]
    g = []
    if t not in LATEK and not (t in RING and t >= 6):
        g += k_dma(0, t)
    g += v_dma(t)
    spread_groups(g, 3, p + 1, p + 9)
vs_dma = []
for t in range(8, 12):
    for hf in range(2):
        vs_dma += dma(SV, VDV, t, hf, VSTAGE + 8192 * (t - 8) + 4096 * hf, 'VS')
pvs = ph[max(3 - NEARLY - 1, -1)] + 10
spread_groups(vs_dma, 3, pvs, pvs + 14)
stage_reads = []
for dt in range(4):
    stage_reads.append(valu('v_add_u32 v%d, %d, v%d' % (VST + dt, VSTAGE - VBASE + (1 << 32), VA + dt), vr(VA + dt), vr(VST + dt)))
for ks in range(8):
    for dt in range(4):
        for r in range(2):
            d = VRES(ks, dt) + 2 * r
            stage_reads.append(I('ds_read_b64_tr_b16 %s, v%d offset:%d' % (rng('a', d, 2), VST + dt, ks * 4096 + r * 2048), 'ds',
                                 r=vr(VST + dt), w=ar(d, 2)))
addfill(ph[2] + 0.5, sync('VS'))
spread(stage_reads, ph[2] + 1, ph[4] - 3)
addfill(ph[4] - 2, I('s_waitcnt lgkmcnt(0)', 'lgkm0'))
addfill(ph[4] - 2, salu('s_barrier'))
lk = []
for t in LATEK:
    lk += k_dma(0, t)
spread_groups(lk, 3, ph[4] + 10, ph[4] + 30)

if OPT['pf']:
    for it in range(2):
        for qt in range(2):
            p = (ph[4] + 31 + 0.5 * qt) if it == 0 else (ph[11] + 18 + 0.5 * qt)
            addfill(p, I('buffer_load_dword %s, v%d, s[%d:%d], s%d offen%s' % (('a255' if it == 0 else 'v%d' % VDV), VPF, SQ, SQ + 3, S_QOFF + (it + 1) * 2 + qt, ' nt' if OPT['pfnt'] else ''),
                         'vload', r=vr(VPF), w=[('res', 'junk')]))

def qload_l2(it, qt, s):
    d = QB(it % 2, qt, s)
    return I('buffer_load_dwordx4 %s, v%d, s[%d:%d], s%d offen offset:%d' %
             (rng('a', d, 4), VQO, SQ, SQ + 3, S_QOFF + it * 2 + qt, 32 * s), 'vload', r=vr(VQO), w=ar(d, 4))


items = [qload_l2(1, qt, s) for qt in range(2) for s in range(8)]
for j, x in enumerate(items):
    addfill(math.floor(ph[7] + 2 + 7 * j), x)
for it in range(2):
    ls = sorted(late_stores[it], key=lambda x: (x[0], x[1]))
    lo = ph[12 * (it + 1) + 2] + 2
    for j, (qt, s8, st) in enumerate(ls):
        p = lo + 16 * j
        addfill(p, st)
        if it == 0:
            addfill(p + 8, qload_l2(2, qt, s8))

if OPT['stamp']:
    stamp_ph = [-1, 0, 1, 2, 4, 8, 12, 13, 14, 18, 24, 25, 30, 36]
    if OPT.get('st0') is not None:
        stamp_ph = list(range(OPT['st0'], OPT['st0'] + 14))
    for i, n in enumerate(stamp_ph):
        addfill(ph[n] - 0.9, salu('s_memtime s[%d:%d]' % (66 + 2 * i, 67 + 2 * i)))

def merge():
    fl = sorted(fill, key=lambda x: (x[0], x[1]))
    prog = list(pro)
    fi = 0
    while fi < len(fl) and fl[fi][0] < 0:
        prog.append(fl[fi][2])
        fi += 1
    for g in range(NM):
        prog.append(mf[g])
        while fi < len(fl) and fl[fi][0] < g + 1 and (g < NM - 1):
            prog.append(fl[fi][2])
            fi += 1
    while fi < len(fl):
        prog.append(fl[fi][2])
        fi += 1
    return prog


def insert_waits(prog):
    out = []
    lq = []
    lage = []
    vq = []
    nmf = 0
    for ins in prog:
        if ins.k == 'mfma':
            nmf += 1
        touched = set(ins.r) | set(x for x in ins.w if x[0] != 'res') | set(ins.c)
        if ins.k in ('ds', 'dsw'):
            touched_l = set(x for x in touched if x[0] != 'res')
        else:
            touched_l = touched
        need_l = None
        for i, s in enumerate(lq):
            if s & touched_l:
                need_l = i
        need_v = None
        for i, s in enumerate(vq):
            if s & touched:
                need_v = i
        parts = []
        if need_v is not None:
            n = min(len(vq) - 1 - need_v, 63)
            parts.append('vmcnt(%d)' % n)
            vq = vq[len(vq) - n:] if n > 0 else []
        if need_l is not None:
            while need_l + 1 < len(lq) and nmf - lage[need_l + 1] >= OPT.get('wage', 5):
                need_l += 1
            n = min(len(lq) - 1 - need_l, 15)
            parts.append('lgkmcnt(%d)' % n)
            lq = lq[len(lq) - n:] if n > 0 else []
            lage = lage[len(lage) - n:] if n > 0 else []
        if parts:
            out.append(I('s_waitcnt ' + ' '.join(parts), 'wait'))
        out.append(ins)
        if ins.k in ('ds', 'dsw'):
            lq.append(set(ins.w))
            lage.append(nmf)
        elif ins.k == 'lgkm0':
            lq = []
            lage = []
        elif ins.k in ('vload', 'dma'):
            vq.append(set(ins.w))
        elif ins.k == 'vstore':
            vq.append(set())
    return out


def insert_nops(prog):
    out = []
    pos = 0
    lastw = {}
    lastc = {}
    laststore = {}
    for ins in prog:
        need = 0
        k = ins.k
        if k == 'mfma':
            for r in ins.r:
                if r in lastw:
                    p, wk, _ = lastw[r]
                    ws = pos - p - 1
                    if wk in ('valu', 'trans', 'perm'):
                        need = max(need, 2 - ws)
                    elif wk == 'mfma':
                        need = max(need, 12 - ws)
            for r in ins.c:
                if r in lastw:
                    p, wk, dk = lastw[r]
                    ws = pos - p - 1
                    if wk in ('valu', 'trans', 'perm'):
                        need = max(need, 2 - ws)
                    elif wk == 'mfma' and dk != ins.c[0]:
                        need = max(need, 10 - ws)
        elif k in ('valu', 'trans', 'perm', 'ds', 'dsw', 'vload', 'vstore', 'dma'):
            for r in list(ins.r) + list(ins.w):
                if r in lastw:
                    p, wk, _ = lastw[r]
                    ws = pos - p - 1
                    if wk == 'mfma':
                        need = max(need, 12 - ws)
            if k in ('valu', 'perm'):
                for r in ins.r:
                    if r in lastw and lastw[r][1] == 'trans':
                        need = max(need, 1 - (pos - lastw[r][0] - 1))
            if k == 'perm':
                for r in ins.r:
                    if r in lastw and lastw[r][1] in ('valu', 'trans', 'perm'):
                        need = max(need, 2 - (pos - lastw[r][0] - 1))
            if k in ('valu', 'trans', 'perm'):
                for r in ins.w:
                    if r in lastc:
                        need = max(need, 7 - (pos - lastc[r] - 1))
                    if r in laststore:
                        need = max(need, 2 - (pos - laststore[r] - 1))
        if need > 0:
            out.append(I('s_nop %d' % (need - 1), 'salu'))
            pos += need
        out.append(ins)
        if k == 'salu' and ins.t.startswith('s_nop'):
            pos += int(ins.t.split()[1]) + 1
        else:
            pos += 1
        for r in ins.w:
            lastw[r] = (pos - 1, k, ins.w[0] if k == 'mfma' else None)
        if k == 'mfma':
            for r in ins.c:
                lastc[r] = pos - 1
        if k == 'vstore':
            for r in ins.r:
                laststore[r] = pos - 1
    return out


base_fill = list(fill)
extra = {}
for _pass in range(3):
    fill[:] = base_fill
    place_flex(extra)
    prog = insert_nops(insert_waits(merge()))
    extra = {}
    g = -1
    for ins in prog:
        if ins.k == 'mfma':
            g += 1
        elif ins.k == 'wait' or (ins.k == 'salu' and ins.t.startswith('s_nop') and ins.cost == 5):
            extra[g] = extra.get(g, 0) + 4

if OPT.get('x_nolgkm'):
    prog = [i for i in prog if not (i.k == 'wait' and 'vmcnt' not in i.t)]
if OPT.get('x_noexp'):
    for i in prog:
        if i.t.startswith('v_exp'):
            i.t = i.t.replace('v_exp_f32', 'v_mov_b32')
if OPT.get('x_novalu'):
    prog = [i for i in prog if not (i.t.startswith('v_fma') or i.t.startswith('v_add_f32') or i.t.startswith('v_exp') or i.t.startswith('v_cvt'))]
if OPT.get('x_nods'):
    prog = [i for i in prog if not (i.k == 'ds' and i.t.split()[1].startswith('v['))]
slow = []


def L(t):
    slow.append(t)


S_IT, S_CNT, S_QO0, S_QO1, S_KO, S_R3 = 12, 14, 16, 17, 18, 19


def slow_koff():
    L('  s_add_u32 s%d, s%d, s%d' % (S_KO, S_CNT, S_R3))
    L('  s_sub_u32 s%d, s%d, 12' % (S_T, S_KO))
    L('  s_cmp_ge_u32 s%d, 12' % S_KO)
    L('  s_cselect_b32 s%d, s%d, s%d' % (S_KO, S_T, S_KO))
    L('  s_lshl_b32 s%d, s%d, 13' % (S_KO, S_KO))


def slow_qk():
    slow_koff()
    for s in range(8):
        L('  buffer_load_dwordx4 %s, v%d, s[%d:%d], s%d offen offset:%d' % (rng('v', SB(1, 0) + 4 * s, 4), VQO, SK, SK + 3, S_KO, 32 * s))
    L('  s_waitcnt vmcnt(0)')
    for s in range(8):
        for qt in range(2):
            d = SB(0, qt)
            cs = '0' if s == 0 else rng('v', d, 16)
            L('  v_mfma_f32_32x32x16_bf16 %s, %s, %s, %s' % (rng('v', d, 16), rng('v', SB(1, 0) + 4 * s, 4), rng('a', QB(0, qt, s), 4), cs))
    L('  s_nop 15')


def slow_softmax_pv(vsrc):
    for qt in range(2):
        s0 = SB(0, qt)
        for j in range(16):
            L('  v_fma_f32 v%d, v%d, s%d, v%d' % (s0 + j, s0 + j, S_C, NEGM + qt))
        for j in range(16):
            L('  v_exp_f32 v%d, v%d' % (s0 + j, s0 + j))
        L('  s_nop 1')
        for j in range(16):
            L('  v_add_f32 v%d, v%d, v%d' % (LACC + 2 * qt, LACC + 2 * qt, s0 + j))
        for hf in range(2):
            for j in range(4):
                L('  v_cvt_pk_bf16_f32 v%d, v%d, v%d' % (s0 + 8 * hf + j, s0 + 8 * hf + 2 * j, s0 + 8 * hf + 2 * j + 1))
    L('  s_nop 2')
    for ks in range(2):
        for dt in range(4):
            if vsrc is None:
                f = FR[dt]
                for r in range(2):
                    L('  ds_read_b64_tr_b16 %s, v%d offset:%d' % (rng('v', f + 2 * r, 2), VST + dt, ks * 4096 + r * 2048))
                L('  s_waitcnt lgkmcnt(0)')
                a = rng('v', f, 4)
            else:
                a = rng('a', VRES(vsrc * 2 + ks, dt), 4)
            for qt in range(2):
                d = O(qt, dt)
                L('  v_mfma_f32_32x32x16_bf16 %s, %s, %s, %s' % (rng('v', d, 16), a, rng('v', SB(0, qt) + 8 * ks, 4), rng('v', d, 16)))
    L('  s_nop 15')


L('  s_waitcnt vmcnt(0) lgkmcnt(0)')
if OPT['stamp']:
    L('  s_memtime s[94:95]')
    L('  s_load_dwordx2 s[96:97], s[0:1], 40')
    L('  s_waitcnt lgkmcnt(0)')
    L('  s_mov_b32 s98, 0x10000000')
    L('  s_mov_b32 s99, 0x00020000')
    L('  s_lshl_b32 s18, s2, 2')
    L('  s_add_u32 s18, s18, s3')
    L('  s_lshl_b32 s18, s18, 7')
    L('  v_mov_b32 v200, 0')
    L('  s_mov_b64 exec, 1')
    for i in range(16):
        L('  v_mov_b32 v202, s%d' % (64 + 2 * i))
        L('  v_mov_b32 v203, s%d' % (65 + 2 * i))
        L('  buffer_store_dwordx2 v[202:203], v200, s[96:99], s18 offen offset:%d' % (8 * i))
        L('  s_nop 3')
    L('  s_mov_b64 exec, -1')
    L('  s_waitcnt vmcnt(0)')
L('  s_cmp_eq_u32 s%d, 0' % S_FLAGS)
L('  s_cbranch_scc1 L_end')
L('  s_nop 15')
L('  s_nop 15')
L('  s_mul_i32 s%d, s13, %d' % (S_R3, 3 if OPT['rot'] else 0))
L('  s_mov_b32 s%d, 0' % S_IT)
L('L_slow_it:')
L('  s_lshr_b32 s%d, s%d, s%d' % (S_T, S_FLAGS, S_IT))
L('  s_and_b32 s%d, s%d, 1' % (S_T, S_T))
L('  s_cmp_eq_u32 s%d, 0' % S_T)
L('  s_cbranch_scc1 L_slow_next')
L('  s_lshl_b32 s%d, s%d, 14' % (S_QO0, S_IT))
L('  s_add_u32 s%d, s%d, 8192' % (S_QO1, S_QO0))
for qt in range(2):
    for s in range(8):
        L('  buffer_load_dwordx4 %s, v%d, s[%d:%d], s%d offen offset:%d' %
          (rng('a', QB(0, qt, s), 4), VQO, SQ, SQ + 3, S_QO0 + qt, 32 * s))
L('  v_mov_b32 v%d, 0xff800000' % (NEGM + 2))
L('  v_mov_b32 v%d, 0xff800000' % (NEGM + 3))
L('  s_waitcnt vmcnt(0)')
L('  s_mov_b32 s%d, 0' % S_CNT)
L('L_slow_p1:')
slow_qk()
for qt in range(2):
    s0 = SB(0, qt)
    for j in range(16):
        L('  v_max_f32 v%d, v%d, v%d' % (NEGM + 2 + qt, NEGM + 2 + qt, s0 + j))
L('  s_add_u32 s%d, s%d, 1' % (S_CNT, S_CNT))
L('  s_cmp_lt_u32 s%d, 12' % S_CNT)
L('  s_cbranch_scc1 L_slow_p1')
for qt in range(2):
    x = NEGM + 2 + qt
    L('  v_mov_b32 v%d, v%d' % (RCP, x))
    L('  s_nop 2')
    L('  v_permlane32_swap_b32 v%d, v%d' % (x, RCP))
    L('  s_nop 1')
    L('  v_max_f32 v%d, v%d, v%d' % (x, x, RCP))
    L('  v_mul_f32 v%d, s%d, v%d' % (NEGM + qt, S_NC, x))
    L('  v_mov_b32 v%d, 0' % (LACC + 2 * qt))
for j in range(128):
    L('  v_mov_b32 v%d, 0' % j)
for dt in range(4):
    L('  v_mov_b32 v%d, v%d' % (VST + dt, VA + dt))
L('  s_mov_b32 s%d, 0' % S_CNT)
L('L_slow_p2:')
slow_qk()
slow_softmax_pv(None)
for dt in range(4):
    L('  v_add_u32 v%d, 8192, v%d' % (VST + dt, VST + dt))
L('  s_add_u32 s%d, s%d, 1' % (S_CNT, S_CNT))
L('  s_cmp_lt_u32 s%d, 8' % S_CNT)
L('  s_cbranch_scc1 L_slow_p2')
for t in range(4):
    slow_qk()
    slow_softmax_pv(t)
    L('  s_add_u32 s%d, s%d, 1' % (S_CNT, S_CNT))
for qt in range(2):
    la = LACC + 2 * qt
    L('  v_mov_b32 v%d, v%d' % (la + 1, la))
    L('  s_nop 2')
    L('  v_permlane32_swap_b32 v%d, v%d' % (la, la + 1))
    L('  s_nop 1')
    L('  v_add_f32 v%d, v%d, v%d' % (la, la, la + 1))
    L('  v_rcp_f32 v%d, v%d' % (RCP + qt, la))
L('  s_nop 1')
for dt in range(4):
    for qt in range(2):
        o = O(qt, dt)
        for j in range(16):
            L('  v_mul_f32 v%d, v%d, v%d' % (o + j, o + j, RCP + qt))
        for g2 in range(2):
            for j in range(4):
                L('  v_cvt_pk_bf16_f32 v%d, v%d, v%d' % (o + 8 * g2 + j, o + 8 * g2 + 2 * j, o + 8 * g2 + 2 * j + 1))
        L('  s_nop 2')
        for g2 in range(2):
            x = o + 8 * g2
            L('  v_permlane32_swap_b32 v%d, v%d' % (x, x + 2))
            L('  v_permlane32_swap_b32 v%d, v%d' % (x + 1, x + 3))
        L('  s_nop 1')
        for g2 in range(2):
            x = o + 8 * g2
            L('  buffer_store_dwordx4 %s, v%d, s[%d:%d], s%d offen offset:%d' %
              (rng('v', x, 4), VQO, SO, SO + 3, S_QO0 + qt, 64 * dt + 32 * g2))
L('  s_waitcnt vmcnt(0)')
L('L_slow_next:')
L('  s_add_u32 s%d, s%d, 1' % (S_IT, S_IT))
L('  s_cmp_lt_u32 s%d, 3' % S_IT)
L('  s_cbranch_scc1 L_slow_it')

hdr = open('standalone__gqa_softmax__near_ridge.s.ref').read().split('\n')
out = []
for ln in hdr:
    if ln.startswith('; @launch'):
        out.append('; @launch grid=(256,1,1) block=(256,1,1) lds=163840')
        break
    out.append(ln)
out.append('.amdgcn_target "amdgcn-amd-amdhsa--gfx950"')
out.append('.text')
out.append('.globl %s' % NAME)
out.append('.p2align 8')
out.append('.type %s,@function' % NAME)
out.append('%s:' % NAME)
for ins in prog:
    out.append('  ' + ins.t)
out.extend(slow)
out.append('L_end:')
out.append('  s_endpgm')
out.append('.section .rodata,"a"')
out.append('.p2align 6')
out.append('.amdhsa_kernel %s' % NAME)
out.append('  .amdhsa_next_free_vgpr 512')
out.append('  .amdhsa_next_free_sgpr 102')
out.append('  .amdhsa_accum_offset 256')
out.append('  .amdhsa_group_segment_fixed_size 0')
out.append('  .amdhsa_kernarg_size 48')
out.append('  .amdhsa_user_sgpr_count 2')
out.append('  .amdhsa_user_sgpr_kernarg_segment_ptr 1')
out.append('  .amdhsa_system_sgpr_workgroup_id_x 1')
out.append('.end_amdhsa_kernel')
open(sys.argv[1], 'w').write('\n'.join(out) + '\n')
nn = sum(1 for i in prog if i.t.startswith('s_nop'))
nw = sum(1 for i in prog if i.t.startswith('s_waitcnt'))
print('instructions', len(prog), 'mfma', NM, 'nops', nn, 'waits', nw)
```

```python
import sys, math, struct

OPT = dict(cpf=1, pf=1, pfnt=0, dmant=0, stamp=0, nearly=2, qnt=1, kvnt=0, rot=1, lead=7, q0dma=0)
for a in sys.argv[2:]:
    k, v = a.split('=')
    OPT[k] = int(v)

NAME = 'standalone__gqa_softmax__near_ridge_kernel'


class I:
    __slots__ = ('t', 'k', 'r', 'w', 'c', 'cost')

    def __init__(self, t, k, r=(), w=(), c=(), cost=4):
        self.t = t
        self.k = k
        self.r = list(r)
        self.w = list(w)
        self.c = list(c)
        self.cost = cost


def vr(a, n=1):
    return [('v', a + i) for i in range(n)]


def ar(a, n=1):
    return [('a', a + i) for i in range(n)]


def rng(p, a, n):
    return '%s[%d:%d]' % (p, a, a + n - 1)


def O(qt, dt):
    return (qt * 4 + dt) * 16


def SB(b, qt):
    return 128 + (b * 2 + qt) * 16


FR = [192, 196, 200, 204]
KA = 208
VA = 216
VQO = 220
NEGM = 221
LACC = 225
TMP = 233
SA = 245
VG = 249
VL = 250
RCP = 251
VDK = 253
VDV = 254
VPF = 255
VST = TMP + 8


def VRES(ks, dt):
    return (ks * 4 + dt) * 4


def QB(par, qt, s):
    return 128 + par * 64 + (qt * 8 + s) * 4


SQ, SK, SV, SO = 20, 24, 28, 32
S_STG = 36
S_T2 = 38
S_W1K = 40
S_T = 41
S_C = 42
S_NC = 43
S_THR = 44
S_FLAGS = 45
S_QOFF = 46
S_TOFF = 52

KSLOT = {t: t for t in range(12)}
RING = ()
VBASE = 98304
STGBASE = 0
VSTAGE = 65536

C_SCALE = math.log2(math.e) / math.sqrt(128.0)


def f32hex(x):
    return '0x%08x' % struct.unpack('<I', struct.pack('<f', x))[0]


def mfma(d, a, b, c):
    ap, ab = a
    bp, bb = b
    cs = '0' if c is None else rng('v', c, 16)
    t = 'v_mfma_f32_32x32x16_bf16 %s, %s, %s, %s' % (rng('v', d, 16), rng(ap, ab, 4), rng(bp, bb, 4), cs)
    rr = [(ap, ab + i) for i in range(4)] + [(bp, bb + i) for i in range(4)]
    return I(t, 'mfma', r=rr, w=vr(d, 16), c=(vr(c, 16) if c is not None else []), cost=8)


def valu(t, r, w):
    return I(t, 'valu', r=r, w=w)


def trans(t, r, w):
    return I(t, 'trans', r=r, w=w, cost=8)


def salu(t):
    return I(t, 'salu')


def perm(a, b):
    return I('v_permlane32_swap_b32 v%d, v%d' % (a, b), 'perm', r=[('v', a), ('v', b)], w=[('v', a), ('v', b)], cost=8)


pro = []
fill = []


def addfill(pos, inst):
    fill.append((pos, len(fill), inst))


def P(i):
    pro.append(i)


P(salu('s_cmp_ge_u32 s2, 256'))
P(salu('s_cbranch_scc1 L_end'))
if OPT['stamp']:
    P(salu('s_memtime s[64:65]'))
P(salu('s_load_dwordx4 s[4:7], s[0:1], 0'))
P(salu('s_load_dwordx4 s[8:11], s[0:1], 16'))
P(valu('v_lshrrev_b32 v1, 6, v0', vr(0), vr(1)))
P(valu('v_and_b32 v0, 63, v0', vr(0), vr(0)))
P(salu('s_nop 1'))
P(valu('v_readfirstlane_b32 s3, v1', vr(1), []))
if OPT['cpf']:
    P(salu('s_getpc_b64 s[60:61]'))
    P(I('L_pc:', 'label', cost=0))
    P(valu('v_lshlrev_b32 v2, 7, v0', vr(0), vr(2)))
    P(salu('s_lshl_b32 s62, s3, 14'))
    P(valu('v_add_u32 v2, s62, v2', vr(2), vr(2)))
    P(salu('s_mov_b32 s62, L_end - L_pc - 4'))
    P(valu('v_add_u32 v3, 0x2000, v2', vr(2), vr(3)))
    P(valu('v_min_u32 v2, s62, v2', vr(2), vr(2)))
    P(valu('v_min_u32 v3, s62, v3', vr(3), vr(3)))
    P(I('global_load_dword v200, v2, s[60:61]', 'vload', r=vr(2), w=[('res', 'junk')]))
    P(I('global_load_dword v201, v3, s[60:61]', 'vload', r=vr(3), w=[('res', 'junk')]))
P(salu('s_and_b32 s12, s2, 7'))
P(salu('s_lshr_b32 s13, s2, 5'))
P(salu('s_lshl_b32 s13, s13, 3'))
P(salu('s_add_u32 s12, s12, s13'))
P(salu('s_lshr_b32 s13, s2, 3'))
P(salu('s_and_b32 s13, s13, 3'))
P(salu('s_mul_i32 s14, s12, 98304'))
P(salu('s_mul_i32 s15, s12, 3072'))
P(salu('s_mul_i32 s16, s13, 768'))
P(salu('s_add_u32 s15, s15, s16'))
P(salu('s_mul_i32 s16, s3, 192'))
P(salu('s_add_u32 s15, s15, s16'))
P(salu('s_lshl_b32 s15, s15, 8'))
P(salu('s_lshl_b32 s%d, s3, 10' % S_W1K))
P(valu('v_lshrrev_b32 v1, 5, v0', vr(0), vr(1)))
P(valu('v_and_b32 v2, 31, v0', vr(0), vr(2)))
P(valu('v_lshlrev_b32 v6, 8, v2', vr(2), vr(6)))
P(valu('v_lshlrev_b32 v7, 4, v1', vr(1), vr(7)))
P(valu('v_add_u32 v%d, v6, v7' % VQO, vr(6) + vr(7), vr(VQO)))
for it in range(3):
    for qt in range(2):
        P(salu('s_mov_b32 s%d, %d' % (S_QOFF + it * 2 + qt, (it * 64 + qt * 32) * 256)))
P(salu('s_waitcnt lgkmcnt(0)'))
P(salu('s_add_u32 s%d, s4, s15' % SQ))
P(salu('s_addc_u32 s%d, s5, 0' % (SQ + 1)))
P(salu('s_mov_b32 s%d, %d' % (SQ + 2, 192 * 256)))
P(salu('s_mov_b32 s%d, 0x00020000' % (SQ + 3)))


def qload_direct(it, qt, s):
    d = QB(it % 2, qt, s)
    return I('buffer_load_dwordx4 %s, v%d, s[%d:%d], s%d offen offset:%d' %
             (rng('a', d, 4), VQO, SQ, SQ + 3, S_QOFF + it * 2 + qt, 32 * s) + (' nt' if OPT['qnt'] else ''), 'vload',
             r=vr(VQO), w=ar(d, 4))


for qt in range(2):
    for s in range(8):
        P(qload_direct(0, qt, s))

P(salu('s_add_u32 s%d, s6, s14' % SK))
P(salu('s_addc_u32 s%d, s7, 0' % (SK + 1)))
P(salu('s_mov_b32 s%d, 98304' % (SK + 2)))
P(salu('s_mov_b32 s%d, 0x00020000' % (SK + 3)))
P(salu('s_add_u32 s%d, s8, s14' % SV))
P(salu('s_addc_u32 s%d, s9, 0' % (SV + 1)))
P(salu('s_mov_b32 s%d, 98304' % (SV + 2)))
P(salu('s_mov_b32 s%d, 0x00020000' % (SV + 3)))
P(salu('s_add_u32 s%d, s10, s15' % SO))
P(salu('s_addc_u32 s%d, s11, 0' % (SO + 1)))
P(salu('s_mov_b32 s%d, %d' % (SO + 2, 192 * 256)))
P(salu('s_mov_b32 s%d, 0x00020000' % (SO + 3)))
P(salu('s_mul_i32 s16, s13, %d' % (3 if OPT['rot'] else 0)))
for t in range(12):
    P(salu('s_add_u32 s17, s16, %d' % t))
    P(salu('s_sub_u32 s18, s17, 12'))
    P(salu('s_cmp_ge_u32 s17, 12'))
    P(salu('s_cselect_b32 s17, s18, s17'))
    P(salu('s_lshl_b32 s17, s17, 13'))
    P(salu('s_add_u32 s%d, s17, s%d' % (S_TOFF + t, S_W1K)))
P(valu('v_and_b32 v3, 15, v0', vr(0), vr(3)))
P(valu('v_lshrrev_b32 v5, 4, v0', vr(0), vr(5)))
P(valu('v_and_b32 v4, 1, v5', vr(5), vr(4)))
P(valu('v_lshlrev_b32 v6, 2, v5', vr(5), vr(6)))
P(valu('v_xor_b32 v7, v3, v6', vr(3) + vr(6), vr(7)))
P(valu('v_lshlrev_b32 v7, 4, v7', vr(7), vr(7)))
P(valu('v_lshlrev_b32 v8, 8, v5', vr(5), vr(8)))
P(valu('v_add_u32 v%d, v7, v8' % VDV, vr(7) + vr(8), vr(VDV)))
P(salu('s_lshl_b32 s%d, s3, 2' % S_T))
P(valu('v_add_u32 v6, s%d, v5' % S_T, vr(5), vr(6)))
P(valu('v_xor_b32 v7, v3, v6', vr(3) + vr(6), vr(7)))
P(valu('v_lshlrev_b32 v7, 4, v7', vr(7), vr(7)))
P(valu('v_add_u32 v%d, v7, v8' % VDK, vr(7) + vr(8), vr(VDK)))


def dma(srd, voff, t, hf, ldsofs, res):
    return [salu('s_add_u32 m0, s%d, %d' % (S_W1K, ldsofs)),
            salu('s_add_u32 s%d, s%d, %d' % (S_T, S_TOFF + t, 4096 * hf)),
            I('buffer_load_dwordx4 v%d, s[%d:%d], s%d offen%s lds' % (voff, srd, srd + 3, S_T, ' nt' if OPT['kvnt'] else ''),
              'dma', r=vr(voff), w=[('res', res)])]


def k_dma(it, t):
    r = []
    for hf in range(2):
        r += dma(SK, VDK, t, hf, 8192 * KSLOT[t] + 4096 * hf, 'K%d_%d' % (it, t))
    return r


def v_dma(t):
    r = []
    for hf in range(2):
        r += dma(SV, VDV, t, hf, VBASE + 8192 * t + 4096 * hf, 'V%d' % t)
    return r


NEARLY = OPT['nearly']
for t in range(NEARLY):
    for x in k_dma(0, t) + v_dma(t):
        P(x)

P(salu('s_mov_b32 s%d, %s' % (S_C, f32hex(C_SCALE))))
P(salu('s_mov_b32 s%d, %s' % (S_NC, f32hex(-C_SCALE))))
P(salu('s_mov_b32 s%d, %s' % (S_THR, f32hex(65536.0))))
P(salu('s_mov_b32 s%d, 0' % S_FLAGS))
P(salu('s_lshl_b32 s%d, s3, 12' % S_STG))
P(salu('s_add_u32 s%d, s%d, %d' % (S_STG, S_STG, STGBASE)))
P(valu('v_lshlrev_b32 v6, 8, v2', vr(2), vr(6)))
P(valu('v_xor_b32 v7, v1, v3', vr(1) + vr(3), vr(7)))
P(valu('v_lshlrev_b32 v7, 4, v7', vr(7), vr(7)))
P(valu('v_add_u32 v%d, v6, v7' % KA, vr(6) + vr(7), vr(KA)))
for s in range(1, 8):
    P(valu('v_xor_b32 v%d, %d, v%d' % (KA + s, 32 * s, KA), vr(KA), vr(KA + s)))
P(valu('v_lshrrev_b32 v6, 2, v3', vr(3), vr(6)))
P(valu('v_lshlrev_b32 v7, 2, v1', vr(1), vr(7)))
P(valu('v_add_u32 v7, v7, v6', vr(7) + vr(6), vr(7)))
P(valu('v_lshlrev_b32 v7, 8, v7', vr(7), vr(7)))
P(valu('v_lshlrev_b32 v8, 6, v6', vr(6), vr(8)))
P(valu('v_add_u32 v7, v7, v8', vr(7) + vr(8), vr(7)))
P(valu('v_lshlrev_b32 v8, 5, v4', vr(4), vr(8)))
P(valu('v_add_u32 v7, v7, v8', vr(7) + vr(8), vr(7)))
P(valu('v_and_b32 v8, 3, v3', vr(3), vr(8)))
P(valu('v_lshlrev_b32 v8, 3, v8', vr(8), vr(8)))
P(valu('v_add_u32 v7, v7, v8', vr(7) + vr(8), vr(7)))
for dt in range(4):
    P(valu('v_xor_b32 v8, %d, v7' % (dt << 6), vr(7), vr(8)))
    P(valu('v_add_u32 v%d, %d, v8' % (VA + dt, VBASE), vr(8), vr(VA + dt)))
P(valu('v_and_b32 v6, 7, v2', vr(2), vr(6)))
P(valu('v_xor_b32 v6, v6, v1', vr(6) + vr(1), vr(6)))
P(valu('v_lshlrev_b32 v6, 4, v6', vr(6), vr(6)))
P(valu('v_lshlrev_b32 v7, 7, v2', vr(2), vr(7)))
P(valu('v_add_u32 v6, v6, v7', vr(6) + vr(7), vr(6)))
for j in range(4):
    P(valu('v_xor_b32 v7, %d, v6' % (32 * j), vr(6), vr(7)))
    P(valu('v_add_u32 v%d, s%d, v7' % (SA + j, S_STG), vr(7), vr(SA + j)))
P(valu('v_lshrrev_b32 v6, 3, v0', vr(0), vr(6)))
P(valu('v_and_b32 v7, 7, v0', vr(0), vr(7)))
P(valu('v_xor_b32 v7, v7, v6', vr(7) + vr(6), vr(7)))
P(valu('v_lshlrev_b32 v7, 4, v7', vr(7), vr(7)))
P(valu('v_lshlrev_b32 v6, 8, v6', vr(6), vr(6)))
P(valu('v_add_u32 v%d, v6, v7' % VG, vr(6) + vr(7), vr(VG)))
P(valu('v_lshlrev_b32 v6, 4, v0', vr(0), vr(6)))
P(valu('v_add_u32 v%d, s%d, v6' % (VL, S_STG), vr(6), vr(VL)))
P(valu('v_lshlrev_b32 v%d, 7, v0' % VPF, vr(0), vr(VPF)))


def sync(res):
    return I('s_barrier', 'sync', r=[('res', res)])


NT = 36
ph = {}
pv_base = {}
qk_base = {}
idx = 0
for n in range(-1, NT + 1):
    ph[n] = idx
    if n >= 1:
        pv_base[n - 1] = idx
        idx += 16
    if n + 1 <= NT - 1:
        qk_base[n + 1] = idx
        idx += 16
NM = idx


def pv_idx(m, ks, dt, qt):
    return pv_base[m] + ks * 8 + dt * 2 + qt


def qk_idx(m, s, qt):
    return qk_base[m] + s * 2 + qt


def spread(items, lo, hi):
    tot = sum(i.cost for i in items)
    acc = 0
    for i in items:
        addfill(lo + (hi - lo) * acc / tot, i)
        acc += i.cost


flex = []


def spread_flex(items, lo, hi):
    flex.append((items, lo, hi))


BUDGET = OPT.get('budget', 24)


def place_flex(extra):
    used = {}
    for (p, _, ins) in fill:
        g = int(math.floor(p))
        used[g] = used.get(g, 0) + ins.cost
    for g, c in extra.items():
        used[g] = used.get(g, 0) + c
    for (items, lo, hi) in flex:
        glo = int(math.floor(lo))
        ghi = max(int(math.floor(hi)), glo)
        gaps = list(range(glo, ghi + 1))
        C = sum(i.cost for i in items)
        lvl = BUDGET
        while sum(max(0, lvl - used.get(g, 0)) for g in gaps) < C:
            lvl += 2
        av = [max(0, lvl - used.get(g, 0)) for g in gaps]
        A = float(sum(av))
        k = 0
        placed = 0.0
        cum = 0.0
        for gi, g in enumerate(gaps):
            cum += av[gi]
            tgt = C * cum / A
            n_here = 0
            while k < len(items) and (placed + items[k].cost * 0.5 <= tgt or gi == len(gaps) - 1):
                p = max(g + 0.5 + 0.001 * n_here, lo)
                addfill(p, items[k])
                used[g] = used.get(g, 0) + items[k].cost
                placed += items[k].cost
                k += 1
                n_here += 1


def spread_groups(insts, g, lo, hi):
    n = len(insts) // g
    for j in range(n):
        for x in insts[j * g:(j + 1) * g]:
            addfill(lo + (hi - lo) * j / n, x)


mf = [None] * NM
fragctr = [0]
LEAD = OPT['lead']


def newfrag():
    f = FR[fragctr[0] % 4]
    fragctr[0] += 1
    return f


order = []
for n in range(-1, NT + 1):
    if n >= 1:
        order.append(('pv', n - 1))
    if n + 1 <= NT - 1:
        order.append(('qk', n + 1))

khi = False
for kind, m in order:
    it, t = divmod(m, 12)
    b = m % 2
    if kind == 'qk':
        slot = KSLOT[t]
        want_hi = slot >= 8
        for s in range(8):
            f = newfrag()
            u = qk_idx(m, s, 0)
            pos = u - LEAD
            if s == 0 and (it == 0 or t in RING):
                addfill(pos - 0.3, sync('K%d_%d' % (it, t)))
                if t in RING and not (it == 0 and t == 0):
                    nt_ = (t + 3) % 12
                    nit = it + (1 if t == 9 else 0)
                    if t == 0:
                        nt_, nit = 3, it
                    elif t == 3:
                        nt_, nit = 6, it
                    elif t == 6:
                        nt_, nit = 9, it
                    else:
                        nt_, nit = 0, it + 1
                    if nit <= 2:
                        spread_groups(k_dma(nit, nt_), 3, pos + 1.5, pos + 6.5)
            if want_hi != khi:
                addfill(pos - 0.1, valu('v_xor_b32 v%d, 0x10000, v%d' % (KA + s, KA + s), vr(KA + s), vr(KA + s)))
            off = (slot % 8) * 8192
            addfill(pos, I('ds_read_b128 %s, v%d offset:%d' % (rng('v', f, 4), KA + s, off), 'ds', r=vr(KA + s), w=vr(f, 4)))
            for qt in range(2):
                d = SB(b, qt)
                mf[qk_idx(m, s, qt)] = mfma(d, ('v', f), ('a', QB(it % 2, qt, s)), None if s == 0 else d)
        khi = want_hi
    else:
        for ks in range(2):
            for dt in range(4):
                u = pv_idx(m, ks, dt, 0)
                if t < 8:
                    f = newfrag()
                    for r in range(2):
                        off = t * 8192 + ks * 4096 + r * 2048
                        addfill(u - LEAD, I('ds_read_b64_tr_b16 %s, v%d offset:%d' % (rng('v', f + 2 * r, 2), VA + dt, off),
                                            'ds', r=vr(VA + dt), w=vr(f + 2 * r, 2)))
                    a = ('v', f)
                else:
                    a = ('a', VRES((t - 8) * 2 + ks, dt))
                for qt in range(2):
                    d = O(qt, dt)
                    first = (t == 0 and ks == 0)
                    mf[pv_idx(m, ks, dt, qt)] = mfma(d, a, ('v', SB(b, qt) + 8 * ks), None if first else d)

sm_end = {}
for n in range(NT):
    it, t = divmod(n, 12)
    par = it % 2
    b = n % 2
    pre = []
    if t == 0:
        for qt in range(2):
            s0 = SB(b, qt)
            tt = TMP + qt * 4
            pre.append(valu('v_max3_f32 v%d, v%d, v%d, v%d' % (tt, s0, s0 + 1, s0 + 2), vr(s0, 3), vr(tt)))
            pre.append(valu('v_max3_f32 v%d, v%d, v%d, v%d' % (tt + 1, s0 + 3, s0 + 4, s0 + 5), vr(s0 + 3, 3), vr(tt + 1)))
            pre.append(valu('v_max3_f32 v%d, v%d, v%d, v%d' % (tt + 2, s0 + 6, s0 + 7, s0 + 8), vr(s0 + 6, 3), vr(tt + 2)))
            pre.append(valu('v_max3_f32 v%d, v%d, v%d, v%d' % (tt + 3, s0 + 9, s0 + 10, s0 + 11), vr(s0 + 9, 3), vr(tt + 3)))
        for qt in range(2):
            s0 = SB(b, qt)
            tt = TMP + qt * 4
            pre.append(valu('v_max3_f32 v%d, v%d, v%d, v%d' % (tt, tt, s0 + 12, s0 + 13), vr(tt) + vr(s0 + 12, 2), vr(tt)))
            pre.append(valu('v_max3_f32 v%d, v%d, v%d, v%d' % (tt + 1, tt + 1, s0 + 14, s0 + 15), vr(tt + 1) + vr(s0 + 14, 2), vr(tt + 1)))
        for qt in range(2):
            tt = TMP + qt * 4
            pre.append(valu('v_max3_f32 v%d, v%d, v%d, v%d' % (tt + 2, tt + 2, tt + 3, tt), vr(tt + 2, 2) + vr(tt), vr(tt + 2)))
        for qt in range(2):
            tt = TMP + qt * 4
            pre.append(valu('v_max_f32 v%d, v%d, v%d' % (tt, tt + 1, tt + 2), vr(tt + 1, 2), vr(tt)))
        for qt in range(2):
            tt = TMP + qt * 4
            pre.append(valu('v_mov_b32 v%d, v%d' % (tt + 1, tt), vr(tt), vr(tt + 1)))
        for qt in range(2):
            tt = TMP + qt * 4
            pre.append(perm(tt, tt + 1))
        for qt in range(2):
            tt = TMP + qt * 4
            pre.append(valu('v_max_f32 v%d, v%d, v%d' % (tt, tt, tt + 1), vr(tt, 2), vr(tt)))
        for qt in range(2):
            tt = TMP + qt * 4
            nm = NEGM + par * 2 + qt
            pre.append(valu('v_mul_f32 v%d, s%d, v%d' % (nm, S_NC, tt), vr(tt), vr(nm)))
    elems = [(hf, qt, j) for hf in range(2) for qt in range(2) for j in range(8)]

    def reg(e):
        hf, qt, j = e
        return SB(b, qt) + 8 * hf + j

    def f_fma(e):
        hf, qt, j = e
        r = reg(e)
        nm = NEGM + par * 2 + qt
        return valu('v_fma_f32 v%d, v%d, s%d, v%d' % (r, r, S_C, nm), vr(r) + vr(nm), vr(r))

    def f_exp(e):
        r = reg(e)
        return trans('v_exp_f32 v%d, v%d' % (r, r), vr(r), vr(r))

    def f_add(e):
        hf, qt, j = e
        r = reg(e)
        la = LACC + par * 4 + qt * 2 + (j & 1)
        if t == 0 and hf == 0 and j < 2:
            return valu('v_add_f32 v%d, 0, v%d' % (la, r), vr(r), vr(la))
        return valu('v_add_f32 v%d, v%d, v%d' % (la, la, r), vr(la) + vr(r), vr(la))

    def f_cvt(e):
        hf, qt, j = e
        r = reg(e)
        d = SB(b, qt) + 8 * hf + j // 2
        return valu('v_cvt_pk_bf16_f32 v%d, v%d, v%d' % (d, r - 1, r), vr(r - 1, 2), vr(d))

    allseq = []
    NE = len(elems)
    for st in range(-2, NE + 4):
        if 0 <= st + 2 < NE:
            allseq.append(('f', st + 2))
        if 0 <= st < NE:
            allseq.append(('e', st))
        if 0 <= st - 2 < NE:
            allseq.append(('a', st - 2))
        if 0 <= st - 3 < NE and (st - 3) % 2 == 1:
            allseq.append(('c', st - 3))
    items = []
    half0_last = 0
    for k, e in allseq:
        el = elems[e]
        items.append({'f': f_fma, 'e': f_exp, 'a': f_add, 'c': f_cvt}[k](el))
        if k == 'c' and e == 15:
            half0_last = len(items)
    lo = qk_idx(n, 7, 1) + 2
    d0 = pv_idx(n, 0, 0, 0) - 1
    d1 = pv_idx(n, 1, 0, 0) - 2
    hi = min(lo + 31.5, d1)
    full = pre + items
    n0 = len(pre) + half0_last
    tot = sum(i.cost for i in full)
    c0 = sum(i.cost for i in full[:n0])
    mid = lo + (hi - lo) * c0 / tot
    if mid > d0 - 0.5:
        mid = d0 - 0.5
    spread_flex(full[:n0], lo, mid)
    spread_flex(full[n0:], math.floor(mid) + 1, hi)
    sm_end[n] = hi

stg_seq = [0]


def q_chunk(it, qt, dp):
    stg_seq[0] += 1
    tag = 'stg%d' % stg_seq[0]
    d = []
    for i in range(4):
        d.append(salu('s_add_u32 m0, s%d, %d' % (S_STG, 1024 * i)))
        d.append(salu('s_add_u32 s%d, s%d, %d' % (S_T, S_QOFF + it * 2 + qt, 2048 * i + 128 * dp)))
        d.append(I('buffer_load_dwordx4 v%d, s[%d:%d], s%d offen%s lds' % (VG, SQ, SQ + 3, S_T, ' nt' if OPT['dmant'] else ''),
                   'dma', r=vr(VG) + [('res', 'stgR')], w=[('res', tag)]))
    rd = []
    for j in range(4):
        dst = QB(it % 2, qt, dp * 4 + j)
        rd.append(I('ds_read_b128 %s, v%d' % (rng('a', dst, 4), SA + j), 'ds', r=vr(SA + j) + [('res', tag)],
                    w=ar(dst, 4) + [('res', 'stgR')]))
    return d, rd


late_stores = {}
for it in range(3):
    m = 12 * it + 11
    par = it % 2
    last = (it == 2)
    pre = []
    for qt in range(2):
        la = LACC + par * 4 + qt * 2
        pre.append(valu('v_add_f32 v%d, v%d, v%d' % (la, la, la + 1), vr(la, 2), vr(la)))
    for qt in range(2):
        la = LACC + par * 4 + qt * 2
        pre.append(valu('v_mov_b32 v%d, v%d' % (la + 1, la), vr(la), vr(la + 1)))
    for qt in range(2):
        la = LACC + par * 4 + qt * 2
        pre.append(perm(la, la + 1))
    for qt in range(2):
        la = LACC + par * 4 + qt * 2
        pre.append(valu('v_add_f32 v%d, v%d, v%d' % (la, la, la + 1), vr(la, 2), vr(la)))
    for qt in range(2):
        la = LACC + par * 4 + qt * 2
        pre.append(trans('v_rcp_f32 v%d, v%d' % (RCP + qt, la), vr(la), vr(RCP + qt)))
    la0 = LACC + par * 4
    la1 = LACC + par * 4 + 2
    pre.append(valu('v_cmp_ngt_f32 vcc, s%d, v%d' % (S_THR, la0), vr(la0), []))
    pre.append(valu('v_cmp_ngt_f32 s[%d:%d], s%d, v%d' % (S_T2, S_T2 + 1, S_THR, la1), vr(la1), []))
    pre.append(salu('s_nop 3'))
    grp = [salu('s_or_b64 vcc, vcc, s[%d:%d]' % (S_T2, S_T2 + 1)),
           salu('s_cselect_b32 s%d, %d, 0' % (S_T2, 1 << it)),
           salu('s_or_b32 s%d, s%d, s%d' % (S_FLAGS, S_FLAGS, S_T2))]
    p0 = math.floor(sm_end[m]) + 1.0
    spread(pre, p0, p0 + 3)
    for x in grp:
        addfill(p0 + 3.05, x)
    e0 = max(p0 + 3.1, pv_idx(m, 1, 0, 0) + 3)
    dl = (pv_idx(m + 1, 0, 3, 1) - 1) if not last else NM + 5
    chunks = []
    stores = []
    for dt in range(4):
        for qt in range(2):
            blk = []
            o = O(qt, dt)
            for j in range(16):
                blk.append(valu('v_mul_f32 v%d, v%d, v%d' % (o + j, o + j, RCP + qt), vr(o + j) + vr(RCP + qt), vr(o + j)))
            for g2 in range(2):
                for j in range(4):
                    d = o + 8 * g2 + j
                    s = o + 8 * g2 + 2 * j
                    blk.append(valu('v_cvt_pk_bf16_f32 v%d, v%d, v%d' % (d, s, s + 1), vr(s, 2), vr(d)))
            for g2 in range(2):
                x = o + 8 * g2
                blk.append(perm(x, x + 2))
                blk.append(perm(x + 1, x + 3))
            for g2 in range(2):
                x = o + 8 * g2
                if not last:
                    sb = QB(par, qt, dt * 2 + g2)
                    for j in range(4):
                        blk.append(valu('v_accvgpr_write_b32 a%d, v%d' % (sb + j, x + j), vr(x + j), ar(sb + j)))
                    stores.append((qt, dt * 2 + g2, I('buffer_store_dwordx4 %s, v%d, s[%d:%d], s%d offen offset:%d' %
                                  (rng('a', sb, 4), VQO, SO, SO + 3, S_QOFF + it * 2 + qt, 64 * dt + 32 * g2), 'vstore',
                                  r=ar(sb, 4) + vr(VQO))))
                else:
                    blk.append(I('buffer_store_dwordx4 %s, v%d, s[%d:%d], s%d offen offset:%d' %
                                 (rng('v', x, 4), VQO, SO, SO + 3, S_QOFF + it * 2 + qt, 64 * dt + 32 * g2), 'vstore',
                                 r=vr(x, 4) + vr(VQO)))
            chunks.append((dt, qt, blk))
    span = dl - e0
    prev_hi = -1
    for j, (dt, qt, blk) in enumerate(chunks):
        lo = e0 + span * j / 8
        hi = e0 + span * (j + 1) / 8 - 0.01
        e_j = pv_idx(m, 1, dt, qt) + 3
        lo = max(lo, e_j, math.floor(prev_hi) + 1)
        if not last:
            d_j = pv_idx(m + 1, 0, dt, qt) - 1
            hi = min(hi, d_j)
        hi = max(hi, lo)
        prev_hi = hi
        spread_flex(blk, lo, hi)
    late_stores[it] = stores

LATEK = (8, 9, 10, 11)
for t in range(NEARLY, 8):
    p = ph[t - NEARLY - 1]
    g = []
    if t not in LATEK and not (t in RING and t >= 6):
        g += k_dma(0, t)
    g += v_dma(t)
    spread_groups(g, 3, p + 1, p + 9)
vs_dma = []
for t in range(8, 12):
    for hf in range(2):
        vs_dma += dma(SV, VDV, t, hf, VSTAGE + 8192 * (t - 8) + 4096 * hf, 'VS')
pvs = ph[max(3 - NEARLY - 1, -1)] + 10
spread_groups(vs_dma, 3, pvs, pvs + 14)
stage_reads = []
for dt in range(4):
    stage_reads.append(valu('v_add_u32 v%d, %d, v%d' % (VST + dt, VSTAGE - VBASE + (1 << 32), VA + dt), vr(VA + dt), vr(VST + dt)))
for ks in range(8):
    for dt in range(4):
        for r in range(2):
            d = VRES(ks, dt) + 2 * r
            stage_reads.append(I('ds_read_b64_tr_b16 %s, v%d offset:%d' % (rng('a', d, 2), VST + dt, ks * 4096 + r * 2048), 'ds',
                                 r=vr(VST + dt), w=ar(d, 2)))
addfill(ph[2] + 0.5, sync('VS'))
spread(stage_reads, ph[2] + 1, ph[4] - 3)
addfill(ph[4] - 2, I('s_waitcnt lgkmcnt(0)', 'lgkm0'))
addfill(ph[4] - 2, salu('s_barrier'))
lk = []
for t in LATEK:
    lk += k_dma(0, t)
spread_groups(lk, 3, ph[4] + 10, ph[4] + 30)

if OPT['pf']:
    for it in range(2):
        for qt in range(2):
            p = (ph[4] + 31 + 0.5 * qt) if it == 0 else (ph[11] + 18 + 0.5 * qt)
            addfill(p, I('buffer_load_dword %s, v%d, s[%d:%d], s%d offen%s' % (('a255' if it == 0 else 'v%d' % VDV), VPF, SQ, SQ + 3, S_QOFF + (it + 1) * 2 + qt, ' nt' if OPT['pfnt'] else ''),
                         'vload', r=vr(VPF), w=[('res', 'junk')]))

def qload_l2(it, qt, s):
    d = QB(it % 2, qt, s)
    return I('buffer_load_dwordx4 %s, v%d, s[%d:%d], s%d offen offset:%d' %
             (rng('a', d, 4), VQO, SQ, SQ + 3, S_QOFF + it * 2 + qt, 32 * s), 'vload', r=vr(VQO), w=ar(d, 4))


items = [qload_l2(1, qt, s) for qt in range(2) for s in range(8)]
for j, x in enumerate(items):
    addfill(math.floor(ph[7] + 2 + 7 * j), x)
for it in range(2):
    ls = sorted(late_stores[it], key=lambda x: (x[0], x[1]))
    lo = ph[12 * (it + 1) + 2] + 2
    for j, (qt, s8, st) in enumerate(ls):
        p = lo + 16 * j
        addfill(p, st)
        if it == 0:
            addfill(p + 8, qload_l2(2, qt, s8))

if OPT['stamp']:
    stamp_ph = [-1, 0, 1, 2, 4, 8, 12, 13, 14, 18, 24, 25, 30, 36]
    if OPT.get('st0') is not None:
        stamp_ph = list(range(OPT['st0'], OPT['st0'] + 14))
    for i, n in enumerate(stamp_ph):
        addfill(ph[n] - 0.9, salu('s_memtime s[%d:%d]' % (66 + 2 * i, 67 + 2 * i)))

def merge():
    fl = sorted(fill, key=lambda x: (x[0], x[1]))
    prog = list(pro)
    fi = 0
    while fi < len(fl) and fl[fi][0] < 0:
        prog.append(fl[fi][2])
        fi += 1
    for g in range(NM):
        prog.append(mf[g])
        while fi < len(fl) and fl[fi][0] < g + 1 and (g < NM - 1):
            prog.append(fl[fi][2])
            fi += 1
    while fi < len(fl):
        prog.append(fl[fi][2])
        fi += 1
    return prog


def insert_waits(prog):
    out = []
    lq = []
    lage = []
    vq = []
    nmf = 0
    for ins in prog:
        if ins.k == 'mfma':
            nmf += 1
        touched = set(ins.r) | set(x for x in ins.w if x[0] != 'res') | set(ins.c)
        if ins.k in ('ds', 'dsw'):
            touched_l = set(x for x in touched if x[0] != 'res')
        else:
            touched_l = touched
        need_l = None
        for i, s in enumerate(lq):
            if s & touched_l:
                need_l = i
        need_v = None
        for i, s in enumerate(vq):
            if s & touched:
                need_v = i
        parts = []
        if need_v is not None:
            n = min(len(vq) - 1 - need_v, 63)
            parts.append('vmcnt(%d)' % n)
            vq = vq[len(vq) - n:] if n > 0 else []
        if need_l is not None:
            while need_l + 1 < len(lq) and nmf - lage[need_l + 1] >= OPT.get('wage', 5):
                need_l += 1
            n = min(len(lq) - 1 - need_l, 15)
            parts.append('lgkmcnt(%d)' % n)
            lq = lq[len(lq) - n:] if n > 0 else []
            lage = lage[len(lage) - n:] if n > 0 else []
        if parts:
            out.append(I('s_waitcnt ' + ' '.join(parts), 'wait'))
        out.append(ins)
        if ins.k in ('ds', 'dsw'):
            lq.append(set(ins.w))
            lage.append(nmf)
        elif ins.k == 'lgkm0':
            lq = []
            lage = []
        elif ins.k in ('vload', 'dma'):
            vq.append(set(ins.w))
        elif ins.k == 'vstore':
            vq.append(set())
    return out


def insert_nops(prog):
    out = []
    pos = 0
    lastw = {}
    lastc = {}
    laststore = {}
    for ins in prog:
        need = 0
        k = ins.k
        if k == 'mfma':
            for r in ins.r:
                if r in lastw:
                    p, wk, _ = lastw[r]
                    ws = pos - p - 1
                    if wk in ('valu', 'trans', 'perm'):
                        need = max(need, 2 - ws)
                    elif wk == 'mfma':
                        need = max(need, 12 - ws)
            for r in ins.c:
                if r in lastw:
                    p, wk, dk = lastw[r]
                    ws = pos - p - 1
                    if wk in ('valu', 'trans', 'perm'):
                        need = max(need, 2 - ws)
                    elif wk == 'mfma' and dk != ins.c[0]:
                        need = max(need, 10 - ws)
        elif k in ('valu', 'trans', 'perm', 'ds', 'dsw', 'vload', 'vstore', 'dma'):
            for r in list(ins.r) + list(ins.w):
                if r in lastw:
                    p, wk, _ = lastw[r]
                    ws = pos - p - 1
                    if wk == 'mfma':
                        need = max(need, 12 - ws)
            if k in ('valu', 'perm'):
                for r in ins.r:
                    if r in lastw and lastw[r][1] == 'trans':
                        need = max(need, 1 - (pos - lastw[r][0] - 1))
            if k == 'perm':
                for r in ins.r:
                    if r in lastw and lastw[r][1] in ('valu', 'trans', 'perm'):
                        need = max(need, 2 - (pos - lastw[r][0] - 1))
            if k in ('valu', 'trans', 'perm'):
                for r in ins.w:
                    if r in lastc:
                        need = max(need, 7 - (pos - lastc[r] - 1))
                    if r in laststore:
                        need = max(need, 2 - (pos - laststore[r] - 1))
        if need > 0:
            out.append(I('s_nop %d' % (need - 1), 'salu'))
            pos += need
        out.append(ins)
        if k == 'salu' and ins.t.startswith('s_nop'):
            pos += int(ins.t.split()[1]) + 1
        else:
            pos += 1
        for r in ins.w:
            lastw[r] = (pos - 1, k, ins.w[0] if k == 'mfma' else None)
        if k == 'mfma':
            for r in ins.c:
                lastc[r] = pos - 1
        if k == 'vstore':
            for r in ins.r:
                laststore[r] = pos - 1
    return out


base_fill = list(fill)
extra = {}
for _pass in range(3):
    fill[:] = base_fill
    place_flex(extra)
    prog = insert_nops(insert_waits(merge()))
    extra = {}
    g = -1
    for ins in prog:
        if ins.k == 'mfma':
            g += 1
        elif ins.k == 'wait' or (ins.k == 'salu' and ins.t.startswith('s_nop') and ins.cost == 5):
            extra[g] = extra.get(g, 0) + 4

if OPT.get('x_nolgkm'):
    prog = [i for i in prog if not (i.k == 'wait' and 'vmcnt' not in i.t)]
if OPT.get('x_noexp'):
    for i in prog:
        if i.t.startswith('v_exp'):
            i.t = i.t.replace('v_exp_f32', 'v_mov_b32')
if OPT.get('x_novalu'):
    prog = [i for i in prog if not (i.t.startswith('v_fma') or i.t.startswith('v_add_f32') or i.t.startswith('v_exp') or i.t.startswith('v_cvt'))]
if OPT.get('x_nods'):
    prog = [i for i in prog if not (i.k == 'ds' and i.t.split()[1].startswith('v['))]
slow = []


def L(t):
    slow.append(t)


S_IT, S_CNT, S_QO0, S_QO1, S_KO, S_R3 = 12, 14, 16, 17, 18, 19


def slow_koff():
    L('  s_add_u32 s%d, s%d, s%d' % (S_KO, S_CNT, S_R3))
    L('  s_sub_u32 s%d, s%d, 12' % (S_T, S_KO))
    L('  s_cmp_ge_u32 s%d, 12' % S_KO)
    L('  s_cselect_b32 s%d, s%d, s%d' % (S_KO, S_T, S_KO))
    L('  s_lshl_b32 s%d, s%d, 13' % (S_KO, S_KO))


def slow_qk():
    slow_koff()
    for s in range(8):
        L('  buffer_load_dwordx4 %s, v%d, s[%d:%d], s%d offen offset:%d' % (rng('v', SB(1, 0) + 4 * s, 4), VQO, SK, SK + 3, S_KO, 32 * s))
    L('  s_waitcnt vmcnt(0)')
    for s in range(8):
        for qt in range(2):
            d = SB(0, qt)
            cs = '0' if s == 0 else rng('v', d, 16)
            L('  v_mfma_f32_32x32x16_bf16 %s, %s, %s, %s' % (rng('v', d, 16), rng('v', SB(1, 0) + 4 * s, 4), rng('a', QB(0, qt, s), 4), cs))
    L('  s_nop 15')


def slow_softmax_pv(vsrc):
    for qt in range(2):
        s0 = SB(0, qt)
        for j in range(16):
            L('  v_fma_f32 v%d, v%d, s%d, v%d' % (s0 + j, s0 + j, S_C, NEGM + qt))
        for j in range(16):
            L('  v_exp_f32 v%d, v%d' % (s0 + j, s0 + j))
        L('  s_nop 1')
        for j in range(16):
            L('  v_add_f32 v%d, v%d, v%d' % (LACC + 2 * qt, LACC + 2 * qt, s0 + j))
        for hf in range(2):
            for j in range(4):
                L('  v_cvt_pk_bf16_f32 v%d, v%d, v%d' % (s0 + 8 * hf + j, s0 + 8 * hf + 2 * j, s0 + 8 * hf + 2 * j + 1))
    L('  s_nop 2')
    for ks in range(2):
        for dt in range(4):
            if vsrc is None:
                f = FR[dt]
                for r in range(2):
                    L('  ds_read_b64_tr_b16 %s, v%d offset:%d' % (rng('v', f + 2 * r, 2), VST + dt, ks * 4096 + r * 2048))
                L('  s_waitcnt lgkmcnt(0)')
                a = rng('v', f, 4)
            else:
                a = rng('a', VRES(vsrc * 2 + ks, dt), 4)
            for qt in range(2):
                d = O(qt, dt)
                L('  v_mfma_f32_32x32x16_bf16 %s, %s, %s, %s' % (rng('v', d, 16), a, rng('v', SB(0, qt) + 8 * ks, 4), rng('v', d, 16)))
    L('  s_nop 15')


L('  s_waitcnt vmcnt(0) lgkmcnt(0)')
if OPT['stamp']:
    L('  s_memtime s[94:95]')
    L('  s_load_dwordx2 s[96:97], s[0:1], 40')
    L('  s_waitcnt lgkmcnt(0)')
    L('  s_mov_b32 s98, 0x10000000')
    L('  s_mov_b32 s99, 0x00020000')
    L('  s_lshl_b32 s18, s2, 2')
    L('  s_add_u32 s18, s18, s3')
    L('  s_lshl_b32 s18, s18, 7')
    L('  v_mov_b32 v200, 0')
    L('  s_mov_b64 exec, 1')
    for i in range(16):
        L('  v_mov_b32 v202, s%d' % (64 + 2 * i))
        L('  v_mov_b32 v203, s%d' % (65 + 2 * i))
        L('  buffer_store_dwordx2 v[202:203], v200, s[96:99], s18 offen offset:%d' % (8 * i))
        L('  s_nop 3')
    L('  s_mov_b64 exec, -1')
    L('  s_waitcnt vmcnt(0)')
L('  s_cmp_eq_u32 s%d, 0' % S_FLAGS)
L('  s_cbranch_scc1 L_end')
L('  s_nop 15')
L('  s_nop 15')
L('  s_mul_i32 s%d, s13, %d' % (S_R3, 3 if OPT['rot'] else 0))
L('  s_mov_b32 s%d, 0' % S_IT)
L('L_slow_it:')
L('  s_lshr_b32 s%d, s%d, s%d' % (S_T, S_FLAGS, S_IT))
L('  s_and_b32 s%d, s%d, 1' % (S_T, S_T))
L('  s_cmp_eq_u32 s%d, 0' % S_T)
L('  s_cbranch_scc1 L_slow_next')
L('  s_lshl_b32 s%d, s%d, 14' % (S_QO0, S_IT))
L('  s_add_u32 s%d, s%d, 8192' % (S_QO1, S_QO0))
for qt in range(2):
    for s in range(8):
        L('  buffer_load_dwordx4 %s, v%d, s[%d:%d], s%d offen offset:%d' %
          (rng('a', QB(0, qt, s), 4), VQO, SQ, SQ + 3, S_QO0 + qt, 32 * s))
L('  v_mov_b32 v%d, 0xff800000' % (NEGM + 2))
L('  v_mov_b32 v%d, 0xff800000' % (NEGM + 3))
L('  s_waitcnt vmcnt(0)')
L('  s_mov_b32 s%d, 0' % S_CNT)
L('L_slow_p1:')
slow_qk()
for qt in range(2):
    s0 = SB(0, qt)
    for j in range(16):
        L('  v_max_f32 v%d, v%d, v%d' % (NEGM + 2 + qt, NEGM + 2 + qt, s0 + j))
L('  s_add_u32 s%d, s%d, 1' % (S_CNT, S_CNT))
L('  s_cmp_lt_u32 s%d, 12' % S_CNT)
L('  s_cbranch_scc1 L_slow_p1')
for qt in range(2):
    x = NEGM + 2 + qt
    L('  v_mov_b32 v%d, v%d' % (RCP, x))
    L('  s_nop 2')
    L('  v_permlane32_swap_b32 v%d, v%d' % (x, RCP))
    L('  s_nop 1')
    L('  v_max_f32 v%d, v%d, v%d' % (x, x, RCP))
    L('  v_mul_f32 v%d, s%d, v%d' % (NEGM + qt, S_NC, x))
    L('  v_mov_b32 v%d, 0' % (LACC + 2 * qt))
for j in range(128):
    L('  v_mov_b32 v%d, 0' % j)
for dt in range(4):
    L('  v_mov_b32 v%d, v%d' % (VST + dt, VA + dt))
L('  s_mov_b32 s%d, 0' % S_CNT)
L('L_slow_p2:')
slow_qk()
slow_softmax_pv(None)
for dt in range(4):
    L('  v_add_u32 v%d, 8192, v%d' % (VST + dt, VST + dt))
L('  s_add_u32 s%d, s%d, 1' % (S_CNT, S_CNT))
L('  s_cmp_lt_u32 s%d, 8' % S_CNT)
L('  s_cbranch_scc1 L_slow_p2')
for t in range(4):
    slow_qk()
    slow_softmax_pv(t)
    L('  s_add_u32 s%d, s%d, 1' % (S_CNT, S_CNT))
for qt in range(2):
    la = LACC + 2 * qt
    L('  v_mov_b32 v%d, v%d' % (la + 1, la))
    L('  s_nop 2')
    L('  v_permlane32_swap_b32 v%d, v%d' % (la, la + 1))
    L('  s_nop 1')
    L('  v_add_f32 v%d, v%d, v%d' % (la, la, la + 1))
    L('  v_rcp_f32 v%d, v%d' % (RCP + qt, la))
L('  s_nop 1')
for dt in range(4):
    for qt in range(2):
        o = O(qt, dt)
        for j in range(16):
            L('  v_mul_f32 v%d, v%d, v%d' % (o + j, o + j, RCP + qt))
        for g2 in range(2):
            for j in range(4):
                L('  v_cvt_pk_bf16_f32 v%d, v%d, v%d' % (o + 8 * g2 + j, o + 8 * g2 + 2 * j, o + 8 * g2 + 2 * j + 1))
        L('  s_nop 2')
        for g2 in range(2):
            x = o + 8 * g2
            L('  v_permlane32_swap_b32 v%d, v%d' % (x, x + 2))
            L('  v_permlane32_swap_b32 v%d, v%d' % (x + 1, x + 3))
        L('  s_nop 1')
        for g2 in range(2):
            x = o + 8 * g2
            L('  buffer_store_dwordx4 %s, v%d, s[%d:%d], s%d offen offset:%d' %
              (rng('v', x, 4), VQO, SO, SO + 3, S_QO0 + qt, 64 * dt + 32 * g2))
L('  s_waitcnt vmcnt(0)')
L('L_slow_next:')
L('  s_add_u32 s%d, s%d, 1' % (S_IT, S_IT))
L('  s_cmp_lt_u32 s%d, 3' % S_IT)
L('  s_cbranch_scc1 L_slow_it')

hdr = open('standalone__gqa_softmax__near_ridge.s.ref').read().split('\n')
out = []
for ln in hdr:
    if ln.startswith('; @launch'):
        out.append('; @launch grid=(256,1,1) block=(256,1,1) lds=163840')
        break
    out.append(ln)
out.append('.amdgcn_target "amdgcn-amd-amdhsa--gfx950"')
out.append('.text')
out.append('.globl %s' % NAME)
out.append('.p2align 8')
out.append('.type %s,@function' % NAME)
out.append('%s:' % NAME)
for ins in prog:
    out.append('  ' + ins.t)
out.extend(slow)
out.append('L_end:')
out.append('  s_endpgm')
out.append('.section .rodata,"a"')
out.append('.p2align 6')
out.append('.amdhsa_kernel %s' % NAME)
out.append('  .amdhsa_next_free_vgpr 512')
out.append('  .amdhsa_next_free_sgpr 102')
out.append('  .amdhsa_accum_offset 256')
out.append('  .amdhsa_group_segment_fixed_size 0')
out.append('  .amdhsa_kernarg_size 48')
out.append('  .amdhsa_user_sgpr_count 2')
out.append('  .amdhsa_user_sgpr_kernarg_segment_ptr 1')
out.append('  .amdhsa_system_sgpr_workgroup_id_x 1')
out.append('.end_amdhsa_kernel')
open(sys.argv[1], 'w').write('\n'.join(out) + '\n')
nn = sum(1 for i in prog if i.t.startswith('s_nop'))
nw = sum(1 for i in prog if i.t.startswith('s_waitcnt'))
print('instructions', len(prog), 'mfma', NM, 'nops', nn, 'waits', nw)
```

```python
import sys, math, struct

OPT = dict(cpf=1, pf=1, pfnt=0, dmant=0, stamp=0, nearly=2, qnt=1, kvnt=0, rot=1, lead=7, q0dma=0)
for a in sys.argv[2:]:
    k, v = a.split('=')
    OPT[k] = int(v)

NAME = 'standalone__gqa_softmax__near_ridge_kernel'


class I:
    __slots__ = ('t', 'k', 'r', 'w', 'c', 'cost')

    def __init__(self, t, k, r=(), w=(), c=(), cost=4):
        self.t = t
        self.k = k
        self.r = list(r)
        self.w = list(w)
        self.c = list(c)
        self.cost = cost


def vr(a, n=1):
    return [('v', a + i) for i in range(n)]


def ar(a, n=1):
    return [('a', a + i) for i in range(n)]


def rng(p, a, n):
    return '%s[%d:%d]' % (p, a, a + n - 1)


def O(qt, dt):
    return (qt * 4 + dt) * 16


def SB(b, qt):
    return 128 + (b * 2 + qt) * 16


FR = [192, 196, 200, 204]
KA = 208
VA = 216
VQO = 220
NEGM = 221
LACC = 225
TMP = 233
SA = 245
VG = 249
VL = 250
RCP = 251
VDK = 253
VDV = 254
VPF = 255
VST = TMP + 8


def VRES(ks, dt):
    return (ks * 4 + dt) * 4


def QB(par, qt, s):
    return 128 + par * 64 + (qt * 8 + s) * 4


SQ, SK, SV, SO = 20, 24, 28, 32
S_STG = 36
S_T2 = 38
S_W1K = 40
S_T = 41
S_C = 42
S_NC = 43
S_THR = 44
S_FLAGS = 45
S_QOFF = 46
S_TOFF = 52

KSLOT = {t: t for t in range(12)}
RING = ()
VBASE = 98304
STGBASE = 0
VSTAGE = 65536

C_SCALE = math.log2(math.e) / math.sqrt(128.0)


def f32hex(x):
    return '0x%08x' % struct.unpack('<I', struct.pack('<f', x))[0]


def mfma(d, a, b, c):
    ap, ab = a
    bp, bb = b
    cs = '0' if c is None else rng('v', c, 16)
    t = 'v_mfma_f32_32x32x16_bf16 %s, %s, %s, %s' % (rng('v', d, 16), rng(ap, ab, 4), rng(bp, bb, 4), cs)
    rr = [(ap, ab + i) for i in range(4)] + [(bp, bb + i) for i in range(4)]
    return I(t, 'mfma', r=rr, w=vr(d, 16), c=(vr(c, 16) if c is not None else []), cost=8)


def valu(t, r, w):
    return I(t, 'valu', r=r, w=w)


def trans(t, r, w):
    return I(t, 'trans', r=r, w=w, cost=8)


def salu(t):
    return I(t, 'salu')


def perm(a, b):
    return I('v_permlane32_swap_b32 v%d, v%d' % (a, b), 'perm', r=[('v', a), ('v', b)], w=[('v', a), ('v', b)], cost=8)


pro = []
fill = []


def addfill(pos, inst):
    fill.append((pos, len(fill), inst))


def P(i):
    pro.append(i)


P(salu('s_cmp_ge_u32 s2, 256'))
P(salu('s_cbranch_scc1 L_end'))
if OPT['stamp']:
    P(salu('s_memtime s[64:65]'))
    if OPT.get('dbg'):
        P(salu('s_memrealtime s[98:99]'))
P(salu('s_load_dwordx4 s[4:7], s[0:1], 0'))
P(salu('s_load_dwordx4 s[8:11], s[0:1], 16'))
P(valu('v_lshrrev_b32 v1, 6, v0', vr(0), vr(1)))
P(valu('v_and_b32 v0, 63, v0', vr(0), vr(0)))
P(salu('s_nop 1'))
P(valu('v_readfirstlane_b32 s3, v1', vr(1), []))
if OPT['cpf']:
    P(salu('s_getpc_b64 s[60:61]'))
    P(I('L_pc:', 'label', cost=0))
    P(valu('v_lshlrev_b32 v2, 7, v0', vr(0), vr(2)))
    P(salu('s_lshl_b32 s62, s3, 14'))
    P(valu('v_add_u32 v2, s62, v2', vr(2), vr(2)))
    P(salu('s_mov_b32 s62, L_end - L_pc - 4'))
    P(valu('v_add_u32 v3, 0x2000, v2', vr(2), vr(3)))
    P(valu('v_min_u32 v2, s62, v2', vr(2), vr(2)))
    P(valu('v_min_u32 v3, s62, v3', vr(3), vr(3)))
    P(I('global_load_dword v200, v2, s[60:61]', 'vload', r=vr(2), w=[('res', 'junk')]))
    P(I('global_load_dword v201, v3, s[60:61]', 'vload', r=vr(3), w=[('res', 'junk')]))
P(salu('s_and_b32 s12, s2, 7'))
P(salu('s_lshr_b32 s13, s2, 5'))
P(salu('s_lshl_b32 s13, s13, 3'))
P(salu('s_add_u32 s12, s12, s13'))
P(salu('s_lshr_b32 s13, s2, 3'))
P(salu('s_and_b32 s13, s13, 3'))
P(salu('s_mul_i32 s14, s12, 98304'))
P(salu('s_mul_i32 s15, s12, 3072'))
P(salu('s_mul_i32 s16, s13, 768'))
P(salu('s_add_u32 s15, s15, s16'))
P(salu('s_mul_i32 s16, s3, 192'))
P(salu('s_add_u32 s15, s15, s16'))
P(salu('s_lshl_b32 s15, s15, 8'))
P(salu('s_lshl_b32 s%d, s3, 10' % S_W1K))
P(valu('v_lshrrev_b32 v1, 5, v0', vr(0), vr(1)))
P(valu('v_and_b32 v2, 31, v0', vr(0), vr(2)))
P(valu('v_lshlrev_b32 v6, 8, v2', vr(2), vr(6)))
P(valu('v_lshlrev_b32 v7, 4, v1', vr(1), vr(7)))
P(valu('v_add_u32 v%d, v6, v7' % VQO, vr(6) + vr(7), vr(VQO)))
for it in range(3):
    for qt in range(2):
        P(salu('s_mov_b32 s%d, %d' % (S_QOFF + it * 2 + qt, (it * 64 + qt * 32) * 256)))
P(salu('s_waitcnt lgkmcnt(0)'))
P(salu('s_add_u32 s%d, s4, s15' % SQ))
P(salu('s_addc_u32 s%d, s5, 0' % (SQ + 1)))
P(salu('s_mov_b32 s%d, %d' % (SQ + 2, 192 * 256)))
P(salu('s_mov_b32 s%d, 0x00020000' % (SQ + 3)))


def qload_direct(it, qt, s):
    d = QB(it % 2, qt, s)
    return I('buffer_load_dwordx4 %s, v%d, s[%d:%d], s%d offen offset:%d' %
             (rng('a', d, 4), VQO, SQ, SQ + 3, S_QOFF + it * 2 + qt, 32 * s) + (' nt' if OPT['qnt'] else ''), 'vload',
             r=vr(VQO), w=ar(d, 4))


for qt in range(2):
    for s in range(8):
        P(qload_direct(0, qt, s))

P(salu('s_add_u32 s%d, s6, s14' % SK))
P(salu('s_addc_u32 s%d, s7, 0' % (SK + 1)))
P(salu('s_mov_b32 s%d, 98304' % (SK + 2)))
P(salu('s_mov_b32 s%d, 0x00020000' % (SK + 3)))
P(salu('s_add_u32 s%d, s8, s14' % SV))
P(salu('s_addc_u32 s%d, s9, 0' % (SV + 1)))
P(salu('s_mov_b32 s%d, 98304' % (SV + 2)))
P(salu('s_mov_b32 s%d, 0x00020000' % (SV + 3)))
P(salu('s_add_u32 s%d, s10, s15' % SO))
P(salu('s_addc_u32 s%d, s11, 0' % (SO + 1)))
P(salu('s_mov_b32 s%d, %d' % (SO + 2, 192 * 256)))
P(salu('s_mov_b32 s%d, 0x00020000' % (SO + 3)))
P(salu('s_mul_i32 s16, s13, %d' % (3 if OPT['rot'] else 0)))
for t in range(12):
    P(salu('s_add_u32 s17, s16, %d' % t))
    P(salu('s_sub_u32 s18, s17, 12'))
    P(salu('s_cmp_ge_u32 s17, 12'))
    P(salu('s_cselect_b32 s17, s18, s17'))
    P(salu('s_lshl_b32 s17, s17, 13'))
    P(salu('s_add_u32 s%d, s17, s%d' % (S_TOFF + t, S_W1K)))
P(valu('v_and_b32 v3, 15, v0', vr(0), vr(3)))
P(valu('v_lshrrev_b32 v5, 4, v0', vr(0), vr(5)))
P(valu('v_and_b32 v4, 1, v5', vr(5), vr(4)))
P(valu('v_lshlrev_b32 v6, 2, v5', vr(5), vr(6)))
P(valu('v_xor_b32 v7, v3, v6', vr(3) + vr(6), vr(7)))
P(valu('v_lshlrev_b32 v7, 4, v7', vr(7), vr(7)))
P(valu('v_lshlrev_b32 v8, 8, v5', vr(5), vr(8)))
P(valu('v_add_u32 v%d, v7, v8' % VDV, vr(7) + vr(8), vr(VDV)))
P(salu('s_lshl_b32 s%d, s3, 2' % S_T))
P(valu('v_add_u32 v6, s%d, v5' % S_T, vr(5), vr(6)))
P(valu('v_xor_b32 v7, v3, v6', vr(3) + vr(6), vr(7)))
P(valu('v_lshlrev_b32 v7, 4, v7', vr(7), vr(7)))
P(valu('v_add_u32 v%d, v7, v8' % VDK, vr(7) + vr(8), vr(VDK)))


def dma(srd, voff, t, hf, ldsofs, res):
    return [salu('s_add_u32 m0, s%d, %d' % (S_W1K, ldsofs)),
            salu('s_add_u32 s%d, s%d, %d' % (S_T, S_TOFF + t, 4096 * hf)),
            I('buffer_load_dwordx4 v%d, s[%d:%d], s%d offen%s lds' % (voff, srd, srd + 3, S_T, ' nt' if OPT['kvnt'] else ''),
              'dma', r=vr(voff), w=[('res', res)])]


def k_dma(it, t):
    r = []
    for hf in range(2):
        r += dma(SK, VDK, t, hf, 8192 * KSLOT[t] + 4096 * hf, 'K%d_%d' % (it, t))
    return r


def v_dma(t):
    r = []
    for hf in range(2):
        r += dma(SV, VDV, t, hf, VBASE + 8192 * t + 4096 * hf, 'V%d' % t)
    return r


NEARLY = OPT['nearly']
for t in range(NEARLY):
    for x in k_dma(0, t) + v_dma(t):
        P(x)

P(salu('s_mov_b32 s%d, %s' % (S_C, f32hex(C_SCALE))))
P(salu('s_mov_b32 s%d, %s' % (S_NC, f32hex(-C_SCALE))))
P(salu('s_mov_b32 s%d, %s' % (S_THR, f32hex(65536.0))))
P(salu('s_mov_b32 s%d, 0' % S_FLAGS))
P(salu('s_lshl_b32 s%d, s3, 12' % S_STG))
P(salu('s_add_u32 s%d, s%d, %d' % (S_STG, S_STG, STGBASE)))
P(valu('v_lshlrev_b32 v6, 8, v2', vr(2), vr(6)))
P(valu('v_xor_b32 v7, v1, v3', vr(1) + vr(3), vr(7)))
P(valu('v_lshlrev_b32 v7, 4, v7', vr(7), vr(7)))
P(valu('v_add_u32 v%d, v6, v7' % KA, vr(6) + vr(7), vr(KA)))
for s in range(1, 8):
    P(valu('v_xor_b32 v%d, %d, v%d' % (KA + s, 32 * s, KA), vr(KA), vr(KA + s)))
P(valu('v_lshrrev_b32 v6, 2, v3', vr(3), vr(6)))
P(valu('v_lshlrev_b32 v7, 2, v1', vr(1), vr(7)))
P(valu('v_add_u32 v7, v7, v6', vr(7) + vr(6), vr(7)))
P(valu('v_lshlrev_b32 v7, 8, v7', vr(7), vr(7)))
P(valu('v_lshlrev_b32 v8, 6, v6', vr(6), vr(8)))
P(valu('v_add_u32 v7, v7, v8', vr(7) + vr(8), vr(7)))
P(valu('v_lshlrev_b32 v8, 5, v4', vr(4), vr(8)))
P(valu('v_add_u32 v7, v7, v8', vr(7) + vr(8), vr(7)))
P(valu('v_and_b32 v8, 3, v3', vr(3), vr(8)))
P(valu('v_lshlrev_b32 v8, 3, v8', vr(8), vr(8)))
P(valu('v_add_u32 v7, v7, v8', vr(7) + vr(8), vr(7)))
for dt in range(4):
    P(valu('v_xor_b32 v8, %d, v7' % (dt << 6), vr(7), vr(8)))
    P(valu('v_add_u32 v%d, %d, v8' % (VA + dt, VBASE), vr(8), vr(VA + dt)))
P(valu('v_and_b32 v6, 7, v2', vr(2), vr(6)))
P(valu('v_xor_b32 v6, v6, v1', vr(6) + vr(1), vr(6)))
P(valu('v_lshlrev_b32 v6, 4, v6', vr(6), vr(6)))
P(valu('v_lshlrev_b32 v7, 7, v2', vr(2), vr(7)))
P(valu('v_add_u32 v6, v6, v7', vr(6) + vr(7), vr(6)))
for j in range(4):
    P(valu('v_xor_b32 v7, %d, v6' % (32 * j), vr(6), vr(7)))
    P(valu('v_add_u32 v%d, s%d, v7' % (SA + j, S_STG), vr(7), vr(SA + j)))
P(valu('v_lshrrev_b32 v6, 3, v0', vr(0), vr(6)))
P(valu('v_and_b32 v7, 7, v0', vr(0), vr(7)))
P(valu('v_xor_b32 v7, v7, v6', vr(7) + vr(6), vr(7)))
P(valu('v_lshlrev_b32 v7, 4, v7', vr(7), vr(7)))
P(valu('v_lshlrev_b32 v6, 8, v6', vr(6), vr(6)))
P(valu('v_add_u32 v%d, v6, v7' % VG, vr(6) + vr(7), vr(VG)))
P(valu('v_lshlrev_b32 v6, 4, v0', vr(0), vr(6)))
P(valu('v_add_u32 v%d, s%d, v6' % (VL, S_STG), vr(6), vr(VL)))
P(valu('v_lshlrev_b32 v%d, 7, v0' % VPF, vr(0), vr(VPF)))


def sync(res):
    return I('s_barrier', 'sync', r=[('res', res)])


NT = 36
ph = {}
pv_base = {}
qk_base = {}
idx = 0
for n in range(-1, NT + 1):
    ph[n] = idx
    if n >= 1:
        pv_base[n - 1] = idx
        idx += 16
    if n + 1 <= NT - 1:
        qk_base[n + 1] = idx
        idx += 16
NM = idx


def pv_idx(m, ks, dt, qt):
    return pv_base[m] + ks * 8 + dt * 2 + qt


def qk_idx(m, s, qt):
    return qk_base[m] + s * 2 + qt


def spread(items, lo, hi):
    tot = sum(i.cost for i in items)
    acc = 0
    for i in items:
        addfill(lo + (hi - lo) * acc / tot, i)
        acc += i.cost


flex = []


def spread_flex(items, lo, hi):
    flex.append((items, lo, hi))


BUDGET = OPT.get('budget', 24)


def place_flex(extra):
    used = {}
    for (p, _, ins) in fill:
        g = int(math.floor(p))
        used[g] = used.get(g, 0) + ins.cost
    for g, c in extra.items():
        used[g] = used.get(g, 0) + c
    for (items, lo, hi) in flex:
        glo = int(math.floor(lo))
        ghi = max(int(math.floor(hi)), glo)
        gaps = list(range(glo, ghi + 1))
        C = sum(i.cost for i in items)
        lvl = BUDGET
        while sum(max(0, lvl - used.get(g, 0)) for g in gaps) < C:
            lvl += 2
        av = [max(0, lvl - used.get(g, 0)) for g in gaps]
        A = float(sum(av))
        k = 0
        placed = 0.0
        cum = 0.0
        for gi, g in enumerate(gaps):
            cum += av[gi]
            tgt = C * cum / A
            n_here = 0
            while k < len(items) and (placed + items[k].cost * 0.5 <= tgt or gi == len(gaps) - 1):
                p = max(g + 0.5 + 0.001 * n_here, lo)
                addfill(p, items[k])
                used[g] = used.get(g, 0) + items[k].cost
                placed += items[k].cost
                k += 1
                n_here += 1


def spread_groups(insts, g, lo, hi):
    n = len(insts) // g
    for j in range(n):
        for x in insts[j * g:(j + 1) * g]:
            addfill(lo + (hi - lo) * j / n, x)


mf = [None] * NM
fragctr = [0]
LEAD = OPT['lead']


def newfrag():
    f = FR[fragctr[0] % 4]
    fragctr[0] += 1
    return f


order = []
for n in range(-1, NT + 1):
    if n >= 1:
        order.append(('pv', n - 1))
    if n + 1 <= NT - 1:
        order.append(('qk', n + 1))

khi = False
for kind, m in order:
    it, t = divmod(m, 12)
    b = m % 2
    if kind == 'qk':
        slot = KSLOT[t]
        want_hi = slot >= 8
        for s in range(8):
            f = newfrag()
            u = qk_idx(m, s, 0)
            pos = u - LEAD
            if s == 0 and (it == 0 or t in RING):
                addfill(pos - 0.3, sync('K%d_%d' % (it, t)))
                if t in RING and not (it == 0 and t == 0):
                    nt_ = (t + 3) % 12
                    nit = it + (1 if t == 9 else 0)
                    if t == 0:
                        nt_, nit = 3, it
                    elif t == 3:
                        nt_, nit = 6, it
                    elif t == 6:
                        nt_, nit = 9, it
                    else:
                        nt_, nit = 0, it + 1
                    if nit <= 2:
                        spread_groups(k_dma(nit, nt_), 3, pos + 1.5, pos + 6.5)
            if want_hi != khi:
                addfill(pos - 0.1, valu('v_xor_b32 v%d, 0x10000, v%d' % (KA + s, KA + s), vr(KA + s), vr(KA + s)))
            off = (slot % 8) * 8192
            addfill(pos, I('ds_read_b128 %s, v%d offset:%d' % (rng('v', f, 4), KA + s, off), 'ds', r=vr(KA + s), w=vr(f, 4)))
            for qt in range(2):
                d = SB(b, qt)
                mf[qk_idx(m, s, qt)] = mfma(d, ('v', f), ('a', QB(it % 2, qt, s)), None if s == 0 else d)
        khi = want_hi
    else:
        for ks in range(2):
            for dt in range(4):
                u = pv_idx(m, ks, dt, 0)
                if t < 8:
                    f = newfrag()
                    for r in range(2):
                        off = t * 8192 + ks * 4096 + r * 2048
                        addfill(u - LEAD, I('ds_read_b64_tr_b16 %s, v%d offset:%d' % (rng('v', f + 2 * r, 2), VA + dt, off),
                                            'ds', r=vr(VA + dt), w=vr(f + 2 * r, 2)))
                    a = ('v', f)
                else:
                    a = ('a', VRES((t - 8) * 2 + ks, dt))
                for qt in range(2):
                    d = O(qt, dt)
                    first = (t == 0 and ks == 0)
                    mf[pv_idx(m, ks, dt, qt)] = mfma(d, a, ('v', SB(b, qt) + 8 * ks), None if first else d)

sm_end = {}
for n in range(NT):
    it, t = divmod(n, 12)
    par = it % 2
    b = n % 2
    pre = []
    if t == 0:
        for qt in range(2):
            s0 = SB(b, qt)
            tt = TMP + qt * 4
            pre.append(valu('v_max3_f32 v%d, v%d, v%d, v%d' % (tt, s0, s0 + 1, s0 + 2), vr(s0, 3), vr(tt)))
            pre.append(valu('v_max3_f32 v%d, v%d, v%d, v%d' % (tt + 1, s0 + 3, s0 + 4, s0 + 5), vr(s0 + 3, 3), vr(tt + 1)))
            pre.append(valu('v_max3_f32 v%d, v%d, v%d, v%d' % (tt + 2, s0 + 6, s0 + 7, s0 + 8), vr(s0 + 6, 3), vr(tt + 2)))
            pre.append(valu('v_max3_f32 v%d, v%d, v%d, v%d' % (tt + 3, s0 + 9, s0 + 10, s0 + 11), vr(s0 + 9, 3), vr(tt + 3)))
        for qt in range(2):
            s0 = SB(b, qt)
            tt = TMP + qt * 4
            pre.append(valu('v_max3_f32 v%d, v%d, v%d, v%d' % (tt, tt, s0 + 12, s0 + 13), vr(tt) + vr(s0 + 12, 2), vr(tt)))
            pre.append(valu('v_max3_f32 v%d, v%d, v%d, v%d' % (tt + 1, tt + 1, s0 + 14, s0 + 15), vr(tt + 1) + vr(s0 + 14, 2), vr(tt + 1)))
        for qt in range(2):
            tt = TMP + qt * 4
            pre.append(valu('v_max3_f32 v%d, v%d, v%d, v%d' % (tt + 2, tt + 2, tt + 3, tt), vr(tt + 2, 2) + vr(tt), vr(tt + 2)))
        for qt in range(2):
            tt = TMP + qt * 4
            pre.append(valu('v_max_f32 v%d, v%d, v%d' % (tt, tt + 1, tt + 2), vr(tt + 1, 2), vr(tt)))
        for qt in range(2):
            tt = TMP + qt * 4
            pre.append(valu('v_mov_b32 v%d, v%d' % (tt + 1, tt), vr(tt), vr(tt + 1)))
        for qt in range(2):
            tt = TMP + qt * 4
            pre.append(perm(tt, tt + 1))
        for qt in range(2):
            tt = TMP + qt * 4
            pre.append(valu('v_max_f32 v%d, v%d, v%d' % (tt, tt, tt + 1), vr(tt, 2), vr(tt)))
        for qt in range(2):
            tt = TMP + qt * 4
            nm = NEGM + par * 2 + qt
            pre.append(valu('v_mul_f32 v%d, s%d, v%d' % (nm, S_NC, tt), vr(tt), vr(nm)))
    elems = [(hf, qt, j) for hf in range(2) for qt in range(2) for j in range(8)]

    def reg(e):
        hf, qt, j = e
        return SB(b, qt) + 8 * hf + j

    def f_fma(e):
        hf, qt, j = e
        r = reg(e)
        nm = NEGM + par * 2 + qt
        return valu('v_fma_f32 v%d, v%d, s%d, v%d' % (r, r, S_C, nm), vr(r) + vr(nm), vr(r))

    def f_exp(e):
        r = reg(e)
        return trans('v_exp_f32 v%d, v%d' % (r, r), vr(r), vr(r))

    def f_add(e):
        hf, qt, j = e
        r = reg(e)
        la = LACC + par * 4 + qt * 2 + (j & 1)
        if t == 0 and hf == 0 and j < 2:
            return valu('v_add_f32 v%d, 0, v%d' % (la, r), vr(r), vr(la))
        return valu('v_add_f32 v%d, v%d, v%d' % (la, la, r), vr(la) + vr(r), vr(la))

    def f_cvt(e):
        hf, qt, j = e
        r = reg(e)
        d = SB(b, qt) + 8 * hf + j // 2
        return valu('v_cvt_pk_bf16_f32 v%d, v%d, v%d' % (d, r - 1, r), vr(r - 1, 2), vr(d))

    allseq = []
    NE = len(elems)
    for st in range(-2, NE + 4):
        if 0 <= st + 2 < NE:
            allseq.append(('f', st + 2))
        if 0 <= st < NE:
            allseq.append(('e', st))
        if 0 <= st - 2 < NE:
            allseq.append(('a', st - 2))
        if 0 <= st - 3 < NE and (st - 3) % 2 == 1:
            allseq.append(('c', st - 3))
    items = []
    half0_last = 0
    for k, e in allseq:
        el = elems[e]
        items.append({'f': f_fma, 'e': f_exp, 'a': f_add, 'c': f_cvt}[k](el))
        if k == 'c' and e == 15:
            half0_last = len(items)
    lo = qk_idx(n, 7, 1) + 2
    d0 = pv_idx(n, 0, 0, 0) - 1
    d1 = pv_idx(n, 1, 0, 0) - 2
    hi = min(lo + 31.5, d1)
    full = pre + items
    n0 = len(pre) + half0_last
    tot = sum(i.cost for i in full)
    c0 = sum(i.cost for i in full[:n0])
    mid = lo + (hi - lo) * c0 / tot
    if mid > d0 - 0.5:
        mid = d0 - 0.5
    spread_flex(full[:n0], lo, mid)
    spread_flex(full[n0:], math.floor(mid) + 1, hi)
    sm_end[n] = hi

stg_seq = [0]


def q_chunk(it, qt, dp):
    stg_seq[0] += 1
    tag = 'stg%d' % stg_seq[0]
    d = []
    for i in range(4):
        d.append(salu('s_add_u32 m0, s%d, %d' % (S_STG, 1024 * i)))
        d.append(salu('s_add_u32 s%d, s%d, %d' % (S_T, S_QOFF + it * 2 + qt, 2048 * i + 128 * dp)))
        d.append(I('buffer_load_dwordx4 v%d, s[%d:%d], s%d offen%s lds' % (VG, SQ, SQ + 3, S_T, ' nt' if OPT['dmant'] else ''),
                   'dma', r=vr(VG) + [('res', 'stgR')], w=[('res', tag)]))
    rd = []
    for j in range(4):
        dst = QB(it % 2, qt, dp * 4 + j)
        rd.append(I('ds_read_b128 %s, v%d' % (rng('a', dst, 4), SA + j), 'ds', r=vr(SA + j) + [('res', tag)],
                    w=ar(dst, 4) + [('res', 'stgR')]))
    return d, rd


late_stores = {}
for it in range(3):
    m = 12 * it + 11
    par = it % 2
    last = (it == 2)
    pre = []
    for qt in range(2):
        la = LACC + par * 4 + qt * 2
        pre.append(valu('v_add_f32 v%d, v%d, v%d' % (la, la, la + 1), vr(la, 2), vr(la)))
    for qt in range(2):
        la = LACC + par * 4 + qt * 2
        pre.append(valu('v_mov_b32 v%d, v%d' % (la + 1, la), vr(la), vr(la + 1)))
    for qt in range(2):
        la = LACC + par * 4 + qt * 2
        pre.append(perm(la, la + 1))
    for qt in range(2):
        la = LACC + par * 4 + qt * 2
        pre.append(valu('v_add_f32 v%d, v%d, v%d' % (la, la, la + 1), vr(la, 2), vr(la)))
    for qt in range(2):
        la = LACC + par * 4 + qt * 2
        pre.append(trans('v_rcp_f32 v%d, v%d' % (RCP + qt, la), vr(la), vr(RCP + qt)))
    la0 = LACC + par * 4
    la1 = LACC + par * 4 + 2
    pre.append(valu('v_cmp_ngt_f32 vcc, s%d, v%d' % (S_THR, la0), vr(la0), []))
    pre.append(valu('v_cmp_ngt_f32 s[%d:%d], s%d, v%d' % (S_T2, S_T2 + 1, S_THR, la1), vr(la1), []))
    pre.append(salu('s_nop 3'))
    grp = [salu('s_or_b64 vcc, vcc, s[%d:%d]' % (S_T2, S_T2 + 1)),
           salu('s_cselect_b32 s%d, %d, 0' % (S_T2, 1 << it)),
           salu('s_or_b32 s%d, s%d, s%d' % (S_FLAGS, S_FLAGS, S_T2))]
    p0 = math.floor(sm_end[m]) + 1.0
    spread(pre, p0, p0 + 3)
    for x in grp:
        addfill(p0 + 3.05, x)
    e0 = max(p0 + 3.1, pv_idx(m, 1, 0, 0) + 3)
    dl = (pv_idx(m + 1, 0, 3, 1) - 1) if not last else NM + 5
    chunks = []
    stores = []
    for dt in range(4):
        for qt in range(2):
            blk = []
            o = O(qt, dt)
            for j in range(16):
                blk.append(valu('v_mul_f32 v%d, v%d, v%d' % (o + j, o + j, RCP + qt), vr(o + j) + vr(RCP + qt), vr(o + j)))
            for g2 in range(2):
                for j in range(4):
                    d = o + 8 * g2 + j
                    s = o + 8 * g2 + 2 * j
                    blk.append(valu('v_cvt_pk_bf16_f32 v%d, v%d, v%d' % (d, s, s + 1), vr(s, 2), vr(d)))
            for g2 in range(2):
                x = o + 8 * g2
                blk.append(perm(x, x + 2))
                blk.append(perm(x + 1, x + 3))
            for g2 in range(2):
                x = o + 8 * g2
                if not last:
                    sb = QB(par, qt, dt * 2 + g2)
                    for j in range(4):
                        blk.append(valu('v_accvgpr_write_b32 a%d, v%d' % (sb + j, x + j), vr(x + j), ar(sb + j)))
                    stores.append((qt, dt * 2 + g2, I('buffer_store_dwordx4 %s, v%d, s[%d:%d], s%d offen offset:%d' %
                                  (rng('a', sb, 4), VQO, SO, SO + 3, S_QOFF + it * 2 + qt, 64 * dt + 32 * g2), 'vstore',
                                  r=ar(sb, 4) + vr(VQO))))
                else:
                    blk.append(I('buffer_store_dwordx4 %s, v%d, s[%d:%d], s%d offen offset:%d' %
                                 (rng('v', x, 4), VQO, SO, SO + 3, S_QOFF + it * 2 + qt, 64 * dt + 32 * g2), 'vstore',
                                 r=vr(x, 4) + vr(VQO)))
            chunks.append((dt, qt, blk))
    span = dl - e0
    prev_hi = -1
    for j, (dt, qt, blk) in enumerate(chunks):
        lo = e0 + span * j / 8
        hi = e0 + span * (j + 1) / 8 - 0.01
        e_j = pv_idx(m, 1, dt, qt) + 3
        lo = max(lo, e_j, math.floor(prev_hi) + 1)
        if not last:
            d_j = pv_idx(m + 1, 0, dt, qt) - 1
            hi = min(hi, d_j)
        hi = max(hi, lo)
        prev_hi = hi
        spread_flex(blk, lo, hi)
    late_stores[it] = stores

LATEK = (8, 9, 10, 11)
for t in range(NEARLY, 8):
    p = ph[t - NEARLY - 1]
    g = []
    if t not in LATEK and not (t in RING and t >= 6):
        g += k_dma(0, t)
    g += v_dma(t)
    spread_groups(g, 3, p + 1, p + 9)
vs_dma = []
for t in range(8, 12):
    for hf in range(2):
        vs_dma += dma(SV, VDV, t, hf, VSTAGE + 8192 * (t - 8) + 4096 * hf, 'VS')
pvs = ph[max(3 - NEARLY - 1, -1)] + 10
spread_groups(vs_dma, 3, pvs, pvs + 14)
stage_reads = []
for dt in range(4):
    stage_reads.append(valu('v_add_u32 v%d, %d, v%d' % (VST + dt, VSTAGE - VBASE + (1 << 32), VA + dt), vr(VA + dt), vr(VST + dt)))
for ks in range(8):
    for dt in range(4):
        for r in range(2):
            d = VRES(ks, dt) + 2 * r
            stage_reads.append(I('ds_read_b64_tr_b16 %s, v%d offset:%d' % (rng('a', d, 2), VST + dt, ks * 4096 + r * 2048), 'ds',
                                 r=vr(VST + dt), w=ar(d, 2)))
addfill(ph[2] + 0.5, sync('VS'))
spread(stage_reads, ph[2] + 1, ph[4] - 3)
addfill(ph[4] - 2, I('s_waitcnt lgkmcnt(0)', 'lgkm0'))
addfill(ph[4] - 2, salu('s_barrier'))
lk = []
for t in LATEK:
    lk += k_dma(0, t)
spread_groups(lk, 3, ph[4] + 10, ph[4] + 30)

if OPT['pf']:
    for it in range(2):
        for qt in range(2):
            p = (ph[4] + 31 + 0.5 * qt) if it == 0 else (ph[11] + 18 + 0.5 * qt)
            addfill(p, I('buffer_load_dword %s, v%d, s[%d:%d], s%d offen%s' % (('a255' if it == 0 else 'v%d' % VDV), VPF, SQ, SQ + 3, S_QOFF + (it + 1) * 2 + qt, ' nt' if OPT['pfnt'] else ''),
                         'vload', r=vr(VPF), w=[('res', 'junk')]))

def qload_l2(it, qt, s):
    d = QB(it % 2, qt, s)
    return I('buffer_load_dwordx4 %s, v%d, s[%d:%d], s%d offen offset:%d' %
             (rng('a', d, 4), VQO, SQ, SQ + 3, S_QOFF + it * 2 + qt, 32 * s), 'vload', r=vr(VQO), w=ar(d, 4))


items = [qload_l2(1, qt, s) for qt in range(2) for s in range(8)]
for j, x in enumerate(items):
    addfill(math.floor(ph[7] + 2 + 7 * j), x)
for it in range(2):
    ls = sorted(late_stores[it], key=lambda x: (x[0], x[1]))
    lo = ph[12 * (it + 1) + 2] + 2
    for j, (qt, s8, st) in enumerate(ls):
        p = lo + 16 * j
        addfill(p, st)
        if it == 0:
            addfill(p + 8, qload_l2(2, qt, s8))

if OPT['stamp']:
    stamp_ph = [-1, 0, 1, 2, 4, 8, 12, 13, 14, 18, 24, 25, 30, 36]
    if OPT.get('st0') is not None:
        stamp_ph = list(range(OPT['st0'], OPT['st0'] + 14))
    for i, n in enumerate(stamp_ph):
        addfill(ph[n] - 0.9, salu('s_memtime s[%d:%d]' % (66 + 2 * i, 67 + 2 * i)))

def merge():
    fl = sorted(fill, key=lambda x: (x[0], x[1]))
    prog = list(pro)
    fi = 0
    while fi < len(fl) and fl[fi][0] < 0:
        prog.append(fl[fi][2])
        fi += 1
    for g in range(NM):
        prog.append(mf[g])
        while fi < len(fl) and fl[fi][0] < g + 1 and (g < NM - 1):
            prog.append(fl[fi][2])
            fi += 1
    while fi < len(fl):
        prog.append(fl[fi][2])
        fi += 1
    return prog


def insert_waits(prog):
    out = []
    lq = []
    lage = []
    vq = []
    nmf = 0
    for ins in prog:
        if ins.k == 'mfma':
            nmf += 1
        touched = set(ins.r) | set(x for x in ins.w if x[0] != 'res') | set(ins.c)
        if ins.k in ('ds', 'dsw'):
            touched_l = set(x for x in touched if x[0] != 'res')
        else:
            touched_l = touched
        need_l = None
        for i, s in enumerate(lq):
            if s & touched_l:
                need_l = i
        need_v = None
        for i, s in enumerate(vq):
            if s & touched:
                need_v = i
        parts = []
        if need_v is not None:
            n = min(len(vq) - 1 - need_v, 63)
            parts.append('vmcnt(%d)' % n)
            vq = vq[len(vq) - n:] if n > 0 else []
        if need_l is not None:
            while need_l + 1 < len(lq) and nmf - lage[need_l + 1] >= OPT.get('wage', 5):
                need_l += 1
            n = min(len(lq) - 1 - need_l, 15)
            parts.append('lgkmcnt(%d)' % n)
            lq = lq[len(lq) - n:] if n > 0 else []
            lage = lage[len(lage) - n:] if n > 0 else []
        if parts:
            out.append(I('s_waitcnt ' + ' '.join(parts), 'wait'))
        out.append(ins)
        if ins.k in ('ds', 'dsw'):
            lq.append(set(ins.w))
            lage.append(nmf)
        elif ins.k == 'lgkm0':
            lq = []
            lage = []
        elif ins.k in ('vload', 'dma'):
            vq.append(set(ins.w))
        elif ins.k == 'vstore':
            vq.append(set())
    return out


def insert_nops(prog):
    out = []
    pos = 0
    lastw = {}
    lastc = {}
    laststore = {}
    for ins in prog:
        need = 0
        k = ins.k
        if k == 'mfma':
            for r in ins.r:
                if r in lastw:
                    p, wk, _ = lastw[r]
                    ws = pos - p - 1
                    if wk in ('valu', 'trans', 'perm'):
                        need = max(need, 2 - ws)
                    elif wk == 'mfma':
                        need = max(need, 12 - ws)
            for r in ins.c:
                if r in lastw:
                    p, wk, dk = lastw[r]
                    ws = pos - p - 1
                    if wk in ('valu', 'trans', 'perm'):
                        need = max(need, 2 - ws)
                    elif wk == 'mfma' and dk != ins.c[0]:
                        need = max(need, 10 - ws)
        elif k in ('valu', 'trans', 'perm', 'ds', 'dsw', 'vload', 'vstore', 'dma'):
            for r in list(ins.r) + list(ins.w):
                if r in lastw:
                    p, wk, _ = lastw[r]
                    ws = pos - p - 1
                    if wk == 'mfma':
                        need = max(need, 12 - ws)
            if k in ('valu', 'perm'):
                for r in ins.r:
                    if r in lastw and lastw[r][1] == 'trans':
                        need = max(need, 1 - (pos - lastw[r][0] - 1))
            if k == 'perm':
                for r in ins.r:
                    if r in lastw and lastw[r][1] in ('valu', 'trans', 'perm'):
                        need = max(need, 2 - (pos - lastw[r][0] - 1))
            if k in ('valu', 'trans', 'perm'):
                for r in ins.w:
                    if r in lastc:
                        need = max(need, 7 - (pos - lastc[r] - 1))
                    if r in laststore:
                        need = max(need, 2 - (pos - laststore[r] - 1))
        if need > 0:
            out.append(I('s_nop %d' % (need - 1), 'salu'))
            pos += need
        out.append(ins)
        if k == 'salu' and ins.t.startswith('s_nop'):
            pos += int(ins.t.split()[1]) + 1
        else:
            pos += 1
        for r in ins.w:
            lastw[r] = (pos - 1, k, ins.w[0] if k == 'mfma' else None)
        if k == 'mfma':
            for r in ins.c:
                lastc[r] = pos - 1
        if k == 'vstore':
            for r in ins.r:
                laststore[r] = pos - 1
    return out


base_fill = list(fill)
extra = {}
for _pass in range(3):
    fill[:] = base_fill
    place_flex(extra)
    prog = insert_nops(insert_waits(merge()))
    extra = {}
    g = -1
    for ins in prog:
        if ins.k == 'mfma':
            g += 1
        elif ins.k == 'wait' or (ins.k == 'salu' and ins.t.startswith('s_nop') and ins.cost == 5):
            extra[g] = extra.get(g, 0) + 4

if OPT.get('x_nolgkm'):
    prog = [i for i in prog if not (i.k == 'wait' and 'vmcnt' not in i.t)]
if OPT.get('x_noexp'):
    for i in prog:
        if i.t.startswith('v_exp'):
            i.t = i.t.replace('v_exp_f32', 'v_mov_b32')
if OPT.get('x_novalu'):
    prog = [i for i in prog if not (i.t.startswith('v_fma') or i.t.startswith('v_add_f32') or i.t.startswith('v_exp') or i.t.startswith('v_cvt'))]
if OPT.get('x_nods'):
    prog = [i for i in prog if not (i.k == 'ds' and i.t.split()[1].startswith('v['))]
slow = []


def L(t):
    slow.append(t)


S_IT, S_CNT, S_QO0, S_QO1, S_KO, S_R3 = 12, 14, 16, 17, 18, 19


def slow_koff():
    L('  s_add_u32 s%d, s%d, s%d' % (S_KO, S_CNT, S_R3))
    L('  s_sub_u32 s%d, s%d, 12' % (S_T, S_KO))
    L('  s_cmp_ge_u32 s%d, 12' % S_KO)
    L('  s_cselect_b32 s%d, s%d, s%d' % (S_KO, S_T, S_KO))
    L('  s_lshl_b32 s%d, s%d, 13' % (S_KO, S_KO))


def slow_qk():
    slow_koff()
    for s in range(8):
        L('  buffer_load_dwordx4 %s, v%d, s[%d:%d], s%d offen offset:%d' % (rng('v', SB(1, 0) + 4 * s, 4), VQO, SK, SK + 3, S_KO, 32 * s))
    L('  s_waitcnt vmcnt(0)')
    for s in range(8):
        for qt in range(2):
            d = SB(0, qt)
            cs = '0' if s == 0 else rng('v', d, 16)
            L('  v_mfma_f32_32x32x16_bf16 %s, %s, %s, %s' % (rng('v', d, 16), rng('v', SB(1, 0) + 4 * s, 4), rng('a', QB(0, qt, s), 4), cs))
    L('  s_nop 15')


def slow_softmax_pv(vsrc):
    for qt in range(2):
        s0 = SB(0, qt)
        for j in range(16):
            L('  v_fma_f32 v%d, v%d, s%d, v%d' % (s0 + j, s0 + j, S_C, NEGM + qt))
        for j in range(16):
            L('  v_exp_f32 v%d, v%d' % (s0 + j, s0 + j))
        L('  s_nop 1')
        for j in range(16):
            L('  v_add_f32 v%d, v%d, v%d' % (LACC + 2 * qt, LACC + 2 * qt, s0 + j))
        for hf in range(2):
            for j in range(4):
                L('  v_cvt_pk_bf16_f32 v%d, v%d, v%d' % (s0 + 8 * hf + j, s0 + 8 * hf + 2 * j, s0 + 8 * hf + 2 * j + 1))
    L('  s_nop 2')
    for ks in range(2):
        for dt in range(4):
            if vsrc is None:
                f = FR[dt]
                for r in range(2):
                    L('  ds_read_b64_tr_b16 %s, v%d offset:%d' % (rng('v', f + 2 * r, 2), VST + dt, ks * 4096 + r * 2048))
                L('  s_waitcnt lgkmcnt(0)')
                a = rng('v', f, 4)
            else:
                a = rng('a', VRES(vsrc * 2 + ks, dt), 4)
            for qt in range(2):
                d = O(qt, dt)
                L('  v_mfma_f32_32x32x16_bf16 %s, %s, %s, %s' % (rng('v', d, 16), a, rng('v', SB(0, qt) + 8 * ks, 4), rng('v', d, 16)))
    L('  s_nop 15')


L('  s_waitcnt vmcnt(0) lgkmcnt(0)')
if OPT['stamp']:
    L('  s_memtime s[94:95]')
    if OPT.get('dbg'):
        L('  s_memrealtime s[100:101]')
        L('  s_load_dwordx2 s[96:97], s[0:1], 32')
        L('  s_waitcnt lgkmcnt(0)')
        L('  s_lshl_b32 s18, s2, 2')
        L('  s_add_u32 s18, s18, s3')
        L('  s_cmp_lg_u32 s18, %d' % OPT['dbg'])
        L('  s_cbranch_scc1 L_nodbg')
        L('  s_sub_u32 s100, s100, s98')
        L('  s_mov_b32 s98, 256')
        L('  s_mov_b32 s99, 0x00020000')
        L('  v_mov_b32 v200, 0')
        L('  s_mov_b64 exec, 1')
        for i in range(15):
            L('  s_sub_u32 s18, s%d, s64' % (66 + 2 * i))
            L('  v_mov_b32 v202, s18')
            L('  buffer_store_dword v202, v200, s[96:99], 0 offen offset:%d' % (4 * i))
            L('  s_nop 3')
        L('  v_mov_b32 v202, s100')
        L('  buffer_store_dword v202, v200, s[96:99], 0 offen offset:60')
        L('  s_mov_b64 exec, -1')
        L('  s_waitcnt vmcnt(0)')
        L('L_nodbg:')
    L('  s_load_dwordx2 s[96:97], s[0:1], 40')
    L('  s_waitcnt lgkmcnt(0)')
    L('  s_mov_b32 s98, 0x10000000')
    L('  s_mov_b32 s99, 0x00020000')
    L('  s_lshl_b32 s18, s2, 2')
    L('  s_add_u32 s18, s18, s3')
    L('  s_lshl_b32 s18, s18, 7')
    L('  v_mov_b32 v200, 0')
    L('  s_mov_b64 exec, 1')
    for i in range(16):
        L('  v_mov_b32 v202, s%d' % (64 + 2 * i))
        L('  v_mov_b32 v203, s%d' % (65 + 2 * i))
        L('  buffer_store_dwordx2 v[202:203], v200, s[96:99], s18 offen offset:%d' % (8 * i))
        L('  s_nop 3')
    L('  s_mov_b64 exec, -1')
    L('  s_waitcnt vmcnt(0)')
L('  s_cmp_eq_u32 s%d, 0' % S_FLAGS)
L('  s_cbranch_scc1 L_end')
L('  s_nop 15')
L('  s_nop 15')
L('  s_mul_i32 s%d, s13, %d' % (S_R3, 3 if OPT['rot'] else 0))
L('  s_mov_b32 s%d, 0' % S_IT)
L('L_slow_it:')
L('  s_lshr_b32 s%d, s%d, s%d' % (S_T, S_FLAGS, S_IT))
L('  s_and_b32 s%d, s%d, 1' % (S_T, S_T))
L('  s_cmp_eq_u32 s%d, 0' % S_T)
L('  s_cbranch_scc1 L_slow_next')
L('  s_lshl_b32 s%d, s%d, 14' % (S_QO0, S_IT))
L('  s_add_u32 s%d, s%d, 8192' % (S_QO1, S_QO0))
for qt in range(2):
    for s in range(8):
        L('  buffer_load_dwordx4 %s, v%d, s[%d:%d], s%d offen offset:%d' %
          (rng('a', QB(0, qt, s), 4), VQO, SQ, SQ + 3, S_QO0 + qt, 32 * s))
L('  v_mov_b32 v%d, 0xff800000' % (NEGM + 2))
L('  v_mov_b32 v%d, 0xff800000' % (NEGM + 3))
L('  s_waitcnt vmcnt(0)')
L('  s_mov_b32 s%d, 0' % S_CNT)
L('L_slow_p1:')
slow_qk()
for qt in range(2):
    s0 = SB(0, qt)
    for j in range(16):
        L('  v_max_f32 v%d, v%d, v%d' % (NEGM + 2 + qt, NEGM + 2 + qt, s0 + j))
L('  s_add_u32 s%d, s%d, 1' % (S_CNT, S_CNT))
L('  s_cmp_lt_u32 s%d, 12' % S_CNT)
L('  s_cbranch_scc1 L_slow_p1')
for qt in range(2):
    x = NEGM + 2 + qt
    L('  v_mov_b32 v%d, v%d' % (RCP, x))
    L('  s_nop 2')
    L('  v_permlane32_swap_b32 v%d, v%d' % (x, RCP))
    L('  s_nop 1')
    L('  v_max_f32 v%d, v%d, v%d' % (x, x, RCP))
    L('  v_mul_f32 v%d, s%d, v%d' % (NEGM + qt, S_NC, x))
    L('  v_mov_b32 v%d, 0' % (LACC + 2 * qt))
for j in range(128):
    L('  v_mov_b32 v%d, 0' % j)
for dt in range(4):
    L('  v_mov_b32 v%d, v%d' % (VST + dt, VA + dt))
L('  s_mov_b32 s%d, 0' % S_CNT)
L('L_slow_p2:')
slow_qk()
slow_softmax_pv(None)
for dt in range(4):
    L('  v_add_u32 v%d, 8192, v%d' % (VST + dt, VST + dt))
L('  s_add_u32 s%d, s%d, 1' % (S_CNT, S_CNT))
L('  s_cmp_lt_u32 s%d, 8' % S_CNT)
L('  s_cbranch_scc1 L_slow_p2')
for t in range(4):
    slow_qk()
    slow_softmax_pv(t)
    L('  s_add_u32 s%d, s%d, 1' % (S_CNT, S_CNT))
for qt in range(2):
    la = LACC + 2 * qt
    L('  v_mov_b32 v%d, v%d' % (la + 1, la))
    L('  s_nop 2')
    L('  v_permlane32_swap_b32 v%d, v%d' % (la, la + 1))
    L('  s_nop 1')
    L('  v_add_f32 v%d, v%d, v%d' % (la, la, la + 1))
    L('  v_rcp_f32 v%d, v%d' % (RCP + qt, la))
L('  s_nop 1')
for dt in range(4):
    for qt in range(2):
        o = O(qt, dt)
        for j in range(16):
            L('  v_mul_f32 v%d, v%d, v%d' % (o + j, o + j, RCP + qt))
        for g2 in range(2):
            for j in range(4):
                L('  v_cvt_pk_bf16_f32 v%d, v%d, v%d' % (o + 8 * g2 + j, o + 8 * g2 + 2 * j, o + 8 * g2 + 2 * j + 1))
        L('  s_nop 2')
        for g2 in range(2):
            x = o + 8 * g2
            L('  v_permlane32_swap_b32 v%d, v%d' % (x, x + 2))
            L('  v_permlane32_swap_b32 v%d, v%d' % (x + 1, x + 3))
        L('  s_nop 1')
        for g2 in range(2):
            x = o + 8 * g2
            L('  buffer_store_dwordx4 %s, v%d, s[%d:%d], s%d offen offset:%d' %
              (rng('v', x, 4), VQO, SO, SO + 3, S_QO0 + qt, 64 * dt + 32 * g2))
L('  s_waitcnt vmcnt(0)')
L('L_slow_next:')
L('  s_add_u32 s%d, s%d, 1' % (S_IT, S_IT))
L('  s_cmp_lt_u32 s%d, 3' % S_IT)
L('  s_cbranch_scc1 L_slow_it')

hdr = open('standalone__gqa_softmax__near_ridge.s.ref').read().split('\n')
out = []
for ln in hdr:
    if ln.startswith('; @launch'):
        out.append('; @launch grid=(256,1,1) block=(256,1,1) lds=163840')
        break
    out.append(ln)
out.append('.amdgcn_target "amdgcn-amd-amdhsa--gfx950"')
out.append('.text')
out.append('.globl %s' % NAME)
out.append('.p2align 8')
out.append('.type %s,@function' % NAME)
out.append('%s:' % NAME)
for ins in prog:
    out.append('  ' + ins.t)
out.extend(slow)
out.append('L_end:')
out.append('  s_endpgm')
out.append('.section .rodata,"a"')
out.append('.p2align 6')
out.append('.amdhsa_kernel %s' % NAME)
out.append('  .amdhsa_next_free_vgpr 512')
out.append('  .amdhsa_next_free_sgpr 102')
out.append('  .amdhsa_accum_offset 256')
out.append('  .amdhsa_group_segment_fixed_size 0')
out.append('  .amdhsa_kernarg_size 48')
out.append('  .amdhsa_user_sgpr_count 2')
out.append('  .amdhsa_user_sgpr_kernarg_segment_ptr 1')
out.append('  .amdhsa_system_sgpr_workgroup_id_x 1')
out.append('.end_amdhsa_kernel')
open(sys.argv[1], 'w').write('\n'.join(out) + '\n')
nn = sum(1 for i in prog if i.t.startswith('s_nop'))
nw = sum(1 for i in prog if i.t.startswith('s_waitcnt'))
print('instructions', len(prog), 'mfma', NM, 'nops', nn, 'waits', nw)
```
